```python
import torch

def _softmax(x, axis=-1):
    return torch.softmax(x, dim=axis)
def _gelu(x):
    return torch.nn.functional.gelu(x, approximate="tanh")
def _silu(x):
    return torch.nn.functional.silu(x)
def _sigmoid(x):
    return torch.sigmoid(x)
def _layernorm(x, axis=-1, eps=1e-5):
    m = x.mean(dim=axis, keepdim=True)
    v = x.var(dim=axis, keepdim=True, unbiased=False)
    return (x - m) / torch.sqrt(v + eps)
def _scatter_add(tgt, idx, src, axis=0):
    return tgt.clone().index_add_(axis, idx, src)
def _segment_sum(src, seg, n):
    out = torch.zeros((n,) + src.shape[1:], dtype=src.dtype)
    return out.index_add_(0, seg, src)
def _pad(x, pw):
    flat = tuple(v for pair in reversed(pw) for v in pair)
    return torch.nn.functional.pad(x, flat)

kernel_name = 'recurrent_scan__gqa_block_cached__mixer_channel_mlp__decode'

def setup_inputs():

    _w = (lambda a: (lambda t: t.to(torch.bfloat16) if t.is_floating_point() else t)(torch.as_tensor(a)))
    def _A_setup():
        B, Sq, D = 1, 1, 640
        Hq, Hkv, Sk, Dh = 32, 32, 8192, 192
        assert Hq % Hkv == 0, (Hq, Hkv)
        return {
            "x": _w((lambda *s: torch.randn(*s, dtype=torch.bfloat16) * 0.05)(B, Sq, D)),
            "k_cache": _w((lambda *s: torch.randn(*s, dtype=torch.bfloat16) * 1.6)(B, Hkv, Sk, Dh)),
            "v_cache": _w((lambda *s: torch.randn(*s, dtype=torch.bfloat16) * 1.6)(B, Hkv, Sk, Dh)),
            "wq": _w((lambda *s: torch.randn(*s, dtype=torch.bfloat16) * 1.6)(D, Hq * Dh) * (D ** -0.5)),
            "wo": _w((lambda *s: torch.randn(*s, dtype=torch.bfloat16) * 1.6)(Hq * Dh, D) * ((Hq * Dh) ** -0.5)),
        }
    _A_in = _A_setup()

    def _B_setup():
        B, S, D, F = 1, 1, 640, 1536
        return {
            "x": _w((lambda *s: torch.randn(*s, dtype=torch.bfloat16) * 0.05)(B, S, D)),
            "w1": _w((lambda *s: torch.randn(*s, dtype=torch.bfloat16) * 0.8)(D, F) * (D ** -0.5)),
            "b1": _w((lambda *s: torch.randn(*s, dtype=torch.bfloat16) * 0.4)(F)),
            "w2": _w((lambda *s: torch.randn(*s, dtype=torch.bfloat16) * 0.4)(F, D) * (F ** -0.5)),
            "b2": _w((lambda *s: torch.randn(*s, dtype=torch.bfloat16) * 0.2)(D)),
        }
    _B_in = _B_setup()

    return {
        "A_x": _A_in["x"],
        "A_k_cache": _A_in["k_cache"],
        "A_v_cache": _A_in["v_cache"],
        "A_wq": _A_in["wq"],
        "A_wo": _A_in["wo"],
        "B_x": _B_in["x"],
        "B_w1": _B_in["w1"],
        "B_b1": _B_in["b1"],
        "B_w2": _B_in["w2"],
        "B_b2": _B_in["b2"],
    }

def reference(A_x, A_k_cache, A_v_cache, A_wq, A_wo, B_x, B_w1, B_b1, B_w2, B_b2):
    def _A_ref(x, k_cache, v_cache, wq, wo):
        B, Sq, D = x.shape
        Hq, Dh = 32, 192
        Hkv = k_cache.shape[1]
        rep = Hq // Hkv
        q = (lambda x, *d: x.permute(*d))((x @ wq).reshape(B, Sq, Hq, Dh), 0, 2, 1, 3)
        k = (lambda x, n, axis: torch.repeat_interleave(x, n, dim=axis))(k_cache, rep, axis=1)
        v = (lambda x, n, axis: torch.repeat_interleave(x, n, dim=axis))(v_cache, rep, axis=1)
        scores = torch.einsum("bhqd,bhkd->bhqk", q, k) * (Dh ** -0.5)
        p = _softmax(scores, axis=-1)
        o = torch.einsum("bhqk,bhkd->bhqd", p, v)
        return (lambda x, *d: x.permute(*d))(o, 0, 2, 1, 3).reshape(B, Sq, Hq * Dh) @ wo

    def _B_ref(x, w1, b1, w2, b2):
        y = _layernorm(x, axis=-1)
        h = _gelu(torch.einsum("bsd,df->bsf", y, w1) + b1)
        return torch.einsum("bsf,fd->bsd", h, w2) + b2

    x = A_x
    xn = _layernorm(x, axis=-1)
    s = _A_ref(xn, A_k_cache, A_v_cache, A_wq, A_wo)
    g = _silu(_B_ref(xn, B_w1, B_b1, B_w2, B_b2))
    return x + s * g
```

```python
import struct, sys

NAME = "recurrent_scan__gqa_block_cached__mixer_channel_mlp__decode"
OUT = "cdna_kernels/%s.s" % NAME

NW = 8
NCHUNK = 8
SK = 8192
KEYS_PER_WG = SK // NCHUNK
KEYS_PER_WAVE = KEYS_PER_WG // NW
NTILES = KEYS_PER_WAVE // 16
assert NTILES >= 2 and NTILES % 2 == 0

WS_Q = 0
WS_H = 16384
WS_G = 32768
WS_PART = 65536
WS_WOP = WS_PART + 32 * NCHUNK * 1024
WS_END = WS_WOP + 5 * 32 * 512
WS_SIZE = 402653184

KA_X, KA_K, KA_V, KA_WQ, KA_WO, KA_BX, KA_W1, KA_B1, KA_W2, KA_B2, KA_OUT, KA_DBG, KA_WS = [8 * i for i in range(13)]

def f32(x):
    return "0x%08x" % struct.unpack("<I", struct.pack("<f", x))[0]

LOG2E = 1.4426950408889634

class A:
    def __init__(self):
        self.l = []
    def __call__(self, s):
        import re
        for line in s.split("\n"):
            m = re.search(r"offset:(\d+)", line)
            if m and line.strip().startswith("buffer_"):
                assert int(m.group(1)) <= 4095, line
            if m and line.strip().startswith("ds_"):
                assert int(m.group(1)) <= 65535, line
            self.l.append("    " + line.strip() if line.strip() and not line.strip().endswith(":") else line.strip())
    def label(self, s):
        self.l.append(s + ":")
    def text(self):
        return "\n".join(self.l) + "\n"

def srd(a, d, b, nbytes, add=None):
    if add is None:
        a(f"s_mov_b32 s{d}, s{b}")
        a(f"s_and_b32 s{d+1}, s{b+1}, 0xffff")
    else:
        a(f"s_add_u32 s{d}, s{b}, {add}")
        a(f"s_addc_u32 s{d+1}, s{b+1}, 0")
        a(f"s_and_b32 s{d+1}, s{d+1}, 0xffff")
    a(f"s_mov_b32 s{d+2}, {nbytes}")
    a(f"s_mov_b32 s{d+3}, 0x00020000")

def rbf(a, v):
    a(f"v_cvt_pk_bf16_f32 v{v}, v{v}, v{v}")
    a(f"v_lshlrev_b32 v{v}, 16, v{v}")

def wave_sum(a, v, s):
    a("s_nop 1")
    for sh in (1, 2, 4, 8):
        a(f"v_add_f32_dpp v{v}, v{v}, v{v} row_shr:{sh} row_mask:0xf bank_mask:0xf bound_ctrl:0")
        a("s_nop 1")
    a(f"v_add_f32_dpp v{v}, v{v}, v{v} row_bcast:15 row_mask:0xa bank_mask:0xf")
    a("s_nop 1")
    a(f"v_add_f32_dpp v{v}, v{v}, v{v} row_bcast:31 row_mask:0xc bank_mask:0xf")
    a("s_nop 1")
    a(f"v_readlane_b32 s{s}, v{v}, 63")
    a("s_nop 3")

def layernorm(a, e, t0, t1, t2, s):
    a(f"v_add_f32 v{t0}, v{e}, v{e+1}")
    for i in range(2, 10):
        a(f"v_add_f32 v{t0}, v{t0}, v{e+i}")
    wave_sum(a, t0, s)
    a(f"v_mov_b32 v{t1}, s{s}")
    a(f"v_mul_f32 v{t1}, {f32(1.0/640)}, v{t1}")
    a(f"v_mov_b32 v{t0}, 0")
    for i in range(10):
        a(f"v_sub_f32 v{t2}, v{e+i}, v{t1}")
        a(f"v_fmac_f32 v{t0}, v{t2}, v{t2}")
    wave_sum(a, t0, s)
    a(f"v_mov_b32 v{t0}, s{s}")
    a(f"v_mul_f32 v{t0}, {f32(1.0/640)}, v{t0}")
    rbf(a, t0)
    rbf(a, t1)
    a(f"v_add_f32 v{t0}, {f32(1e-5)}, v{t0}")
    rbf(a, t0)
    a(f"v_sqrt_f32 v{t0}, v{t0}")
    a("s_nop 1")
    rbf(a, t0)
    a(f"v_rcp_f32 v{t2}, v{t0}")
    a("s_nop 1")
    a(f"v_fma_f32 v{t0}, -v{t0}, v{t2}, 1.0")
    a(f"v_fmac_f32 v{t2}, v{t0}, v{t2}")
    for i in range(10):
        a(f"v_sub_f32 v{e+i}, v{e+i}, v{t1}")
        rbf(a, e + i)
        a(f"v_mul_f32 v{e+i}, v{e+i}, v{t2}")
        rbf(a, e + i)

def gemv_loads(a, npass, rg_per_pass, stride, w, voff, srdreg, sbase, stmp, first=0):
    for i in range(first, first + npass):
        off = i * rg_per_pass * stride
        if off == 0:
            a(f"buffer_load_dwordx4 v[{w+4*(i-first)}:{w+4*(i-first)+3}], v{voff}, s[{srdreg}:{srdreg+3}], s{sbase} offen")
        else:
            a(f"s_add_u32 s{stmp}, s{sbase}, {off}")
            a(f"buffer_load_dwordx4 v[{w+4*(i-first)}:{w+4*(i-first)+3}], v{voff}, s[{srdreg}:{srdreg+3}], s{stmp} offen")

def gemv_fma(a, npass, rg_per_pass, w, xr, vlds, acc, t0, t1, first=0, outstanding_after=0):
    for i in range(npass):
        a(f"ds_read_b32 v{xr+i}, v{vlds} offset:{(first+i)*rg_per_pass*4}")
    a("s_waitcnt lgkmcnt(0)")
    for i in range(npass):
        a(f"s_waitcnt vmcnt({min(63, npass-1-i+outstanding_after)})")
        for r in range(4):
            a(f"v_lshlrev_b32 v{t0}, 16, v{w+4*i+r}")
            a(f"v_and_b32 v{t1}, 0xffff0000, v{w+4*i+r}")
            a(f"v_fmac_f32 v{acc+2*r}, v{t0}, v{xr+i}")
            a(f"v_fmac_f32 v{acc+2*r+1}, v{t1}, v{xr+i}")

def gemv_reduce(a, lpr, acc, vred_w, vred_r, res, t0, red_off, tid, sx):
    nrg = 256 // lpr
    a(f"ds_write_b128 v{vred_w}, v[{acc}:{acc+3}] offset:{red_off}")
    a(f"ds_write_b128 v{vred_w}, v[{acc+4}:{acc+7}] offset:{red_off+16}")
    a("s_waitcnt lgkmcnt(0)")
    a("s_barrier")
    a(f"v_cmp_gt_u32 vcc, {lpr*8}, v{tid}")
    a(f"s_and_saveexec_b64 s[{sx}:{sx+1}], vcc")
    for r in range(nrg):
        a(f"ds_read_b32 v{t0+r}, v{vred_r} offset:{red_off + r*lpr*32}")
    a("s_waitcnt lgkmcnt(0)")
    a(f"v_mov_b32 v{res}, v{t0}")
    for r in range(1, nrg):
        a(f"v_add_f32 v{res}, v{res}, v{t0+r}")

a = A()
hdr = open(OUT + ".ref").read().split("\n")
comment = [l for l in hdr if l.startswith(";") and "@launch" not in l and "Override launch" not in l and "grid=ceil" not in l]
out = "\n".join(comment) + "\n"
out += f"; @launch kernel=prep_kernel grid=(120,1,1) block=(256,1,1) lds=16384\n"
out += f"; @launch kernel=attn_kernel grid=({32*NCHUNK},1,1) block=({64*NW},1,1) lds={NW*1536+256}\n"
out += f"; @launch kernel=fin_kernel grid=(170,1,1) block=(256,1,1) lds=16384\n"
out += '.amdgcn_target "amdgcn-amd-amdhsa--gfx950"\n.text\n'

a(".globl prep_kernel")
a(".p2align 8")
a(".type prep_kernel,@function")
a.label("prep_kernel")
a("s_cmp_ge_u32 s2, 120")
a("s_cbranch_scc1 L_prep_done")
a(f"s_load_dwordx2 s[4:5], s[0:1], {KA_X}")
a(f"s_load_dwordx2 s[6:7], s[0:1], {KA_WQ}")
a(f"s_load_dwordx2 s[8:9], s[0:1], {KA_W1}")
a(f"s_load_dwordx2 s[10:11], s[0:1], {KA_B1}")
a(f"s_load_dwordx2 s[12:13], s[0:1], {KA_WS}")
a("v_and_b32 v1, 63, v0")
a("v_and_b32 v2, 7, v0")
a("v_lshrrev_b32 v3, 3, v0")
a("v_lshlrev_b32 v4, 2, v1")
a("s_waitcnt lgkmcnt(0)")
srd(a, 16, 4, 1280)
srd(a, 20, 12, WS_SIZE)
srd(a, 24, 6, 640 * 12288)
srd(a, 28, 8, 640 * 3072)
srd(a, 32, 10, 3072)
for i in range(5):
    a(f"buffer_load_dword v{10+i}, v4, s[16:19], 0 offen offset:{256*i}")
a("s_cmp_ge_u32 s2, 96")
a("s_cbranch_scc1 L_prep_h")

def prep_path(is_h):
    stride = 3072 if is_h else 12288
    sreg = 28 if is_h else 24
    a(f"s_mov_b32 s36, {stride}")
    a("v_mul_lo_u32 v5, v3, s36")
    a("v_lshlrev_b32 v6, 4, v2")
    a("v_add_u32 v5, v5, v6")
    if is_h:
        a("s_sub_u32 s37, s2, 96")
        a("s_lshl_b32 s37, s37, 7")
    else:
        a("s_lshl_b32 s37, s2, 7")
    W = 40
    gemv_loads(a, 20, 32, stride, W, 5, sreg, 37, 38)
    a("s_waitcnt vmcnt(20)")
    E = 20
    for i in range(5):
        a(f"v_lshlrev_b32 v{E+2*i}, 16, v{10+i}")
        a(f"v_and_b32 v{E+2*i+1}, 0xffff0000, v{10+i}")
    layernorm(a, E, 15, 16, 17, 40)
    if is_h:
        layernorm(a, E, 15, 16, 17, 40)
    a("v_lshlrev_b32 v7, 3, v1")
    for i in range(5):
        a(f"ds_write_b64 v7, v[{E+2*i}:{E+2*i+1}] offset:{512*i}")
    a("s_waitcnt lgkmcnt(0)")
    a("s_barrier")
    ACC = 130
    for r in range(8):
        a(f"v_mov_b32 v{ACC+r}, 0")
    a("v_lshlrev_b32 v8, 2, v3")
    gemv_fma(a, 20, 32, W, 140, 8, ACC, 15, 16)
    a("v_lshlrev_b32 v9, 8, v3")
    a("v_lshlrev_b32 v15, 5, v2")
    a("v_add_u32 v9, v9, v15")
    a("v_lshlrev_b32 v15, 2, v0")
    gemv_reduce(a, 8, ACC, 9, 15, 16, 170, 4096, 0, 44)
    rbf(a, 16)
    if is_h:
        a("s_sub_u32 s37, s2, 96")
        a("s_lshl_b32 s37, s37, 7")
        a("v_lshlrev_b32 v17, 1, v0")
        a("buffer_load_ushort v18, v17, s[32:35], s37 offen")
        a("s_waitcnt vmcnt(0)")
        a("v_lshlrev_b32 v18, 16, v18")
        a("v_add_f32 v16, v16, v18")
        rbf(a, 16)
        a("v_mul_f32 v18, v16, v16")
        a(f"v_mul_f32 v18, {f32(0.044715)}, v18")
        a("v_add_f32 v18, 1.0, v18")
        a("v_mul_f32 v18, v18, v16")
        a(f"v_mul_f32 v18, {f32(-2.0*0.7978845608028654*LOG2E)}, v18")
        a("v_exp_f32 v18, v18")
        a("s_nop 1")
        a("v_add_f32 v18, 1.0, v18")
        a("v_rcp_f32 v18, v18")
        a("s_nop 1")
        a("v_mul_f32 v16, v16, v18")
        a("v_cvt_pk_bf16_f32 v16, v16, v16")
        a(f"s_add_u32 s37, s37, {WS_H}")
        a("buffer_store_short v16, v17, s[20:23], s37 offen")
    else:
        a("v_cvt_pk_bf16_f32 v16, v16, v16")
        a("v_lshlrev_b32 v17, 1, v0")
        a("s_lshl_b32 s37, s2, 7")
        a(f"s_add_u32 s37, s37, {WS_Q}")
        a("buffer_store_short v16, v17, s[20:23], s37 offen")
    a("s_endpgm")

prep_path(False)
a.label("L_prep_h")
prep_path(True)
a.label("L_prep_done")
a("s_endpgm")

a(".globl attn_kernel")
a(".p2align 8")
a(".type attn_kernel,@function")
a.label("attn_kernel")
a(f"s_cmp_ge_u32 s2, {32*NCHUNK}")
a("s_cbranch_scc1 L_attn_done")
a(f"s_load_dwordx2 s[4:5], s[0:1], {KA_K}")
a(f"s_load_dwordx2 s[6:7], s[0:1], {KA_V}")
a(f"s_load_dwordx2 s[8:9], s[0:1], {KA_WS}")
a("v_lshrrev_b32 v1, 6, v0")
a("s_nop 0")
a("v_readfirstlane_b32 s10, v1")
a("v_and_b32 v1, 63, v0")
import math
LG = int(math.log2(NCHUNK))
a(f"s_lshr_b32 s11, s2, {LG}")
a(f"s_and_b32 s12, s2, {NCHUNK-1}")
a("s_mul_i32 s13, s11, 3145728")
a("v_and_b32 v2, 15, v1")
a("v_mul_u32_u24 v2, 384, v2")
a("v_lshrrev_b32 v3, 4, v1")
a("v_lshlrev_b32 v3, 4, v3")
a("v_add_u32 v2, v2, v3")
a("s_mul_i32 s14, s11, 384")
a("v_lshlrev_b32 v4, 4, v1")
a("v_mov_b32 v5, 0x40000000")
a("v_cmp_gt_u32 vcc, 48, v1")
a("s_nop 1")
a("v_cndmask_b32 v4, v5, v4, vcc")
a("v_cmp_le_u32 vcc, 24, v1")
a("v_mov_b32 v5, 0")
a("v_mov_b32 v6, 4")
a("s_nop 1")
a("v_cndmask_b32 v5, v5, v6, vcc")
a("v_add_u32 v6, 3072, v4")
a("s_waitcnt lgkmcnt(0)")
srd(a, 16, 4, 3145728, add="s13")
srd(a, 20, 6, 3145728, add="s13")
srd(a, 24, 8, WS_SIZE)
a(f"s_mul_i32 s15, s12, {KEYS_PER_WG*384}")
a(f"s_mul_i32 s28, s10, {KEYS_PER_WAVE*384}")
a("s_add_u32 s15, s15, s28")
Q = 12
KB = [36, 60]
VB = [84, 116]
ACC = 148
M, L = 156, 157
T = 158
P = 168
D = 176
BP = 180
for j in range(6):
    a(f"buffer_load_dwordx4 v[{Q+4*j}:{Q+4*j+3}], v3, s[24:27], s14 offen offset:{64*j+WS_Q}")
def load_k(buf, soff):
    for j in range(6):
        a(f"buffer_load_dwordx4 v[{KB[buf]+4*j}:{KB[buf]+4*j+3}], v2, s[16:19], s{soff} offen offset:{64*j} nt")
def load_v(buf, soff):
    for j in range(8):
        vo = 4 if j < 4 else 6
        a(f"buffer_load_dwordx4 v[{VB[buf]+4*j}:{VB[buf]+4*j+3}], v{vo}, s[20:23], s{soff} offen offset:{768*(j%4)} nt")
load_k(0, 15)
load_v(0, 15)
a(f"s_add_u32 s29, s15, {16*384}")
load_k(1, 29)
load_v(1, 29)
a(f"s_add_u32 s29, s15, {32*384}")
for j in range(8):
    a(f"v_add_u32 v{BP+j}, {8*j}, v5")
    a(f"v_mov_b32 v{ACC+j}, 0")
a(f"v_mov_b32 v{M}, 0xff800000")
a(f"v_mov_b32 v{L}, 0")
a("s_mov_b32 s30, 0")
a.label("L_attn_loop")
for buf in range(2):
    a("s_waitcnt vmcnt(22)")
    for j in range(6):
        c = "0" if j == 0 else f"v[{D}:{D+3}]"
        a(f"v_mfma_f32_16x16x32_bf16 v[{D}:{D+3}], v[{Q+4*j}:{Q+4*j+3}], v[{KB[buf]+4*j}:{KB[buf]+4*j+3}], {c}")
    a(f"s_cmp_lt_u32 s30, {NTILES//2 - 1}")
    a("s_cselect_b32 s31, s29, 0x40000000")
    load_k(buf, 31)
    a("s_nop 4")
    a(f"v_cvt_pk_bf16_f32 v{T}, v{D}, v{D}")
    a(f"v_lshlrev_b32 v{T}, 16, v{T}")
    a(f"v_mul_f32 v{T}, {f32(192 ** -0.5)}, v{T}")
    rbf(a, T)
    a(f"v_mul_f32 v{T}, {f32(LOG2E)}, v{T}")
    a("s_nop 1")
    a(f"v_max_f32_dpp v{T+1}, v{T}, v{T} row_ror:8 row_mask:0xf bank_mask:0xf")
    a("s_nop 1")
    a(f"v_max_f32_dpp v{T+1}, v{T+1}, v{T+1} row_ror:4 row_mask:0xf bank_mask:0xf")
    a("s_nop 1")
    a(f"v_max_f32_dpp v{T+1}, v{T+1}, v{T+1} row_ror:2 row_mask:0xf bank_mask:0xf")
    a("s_nop 1")
    a(f"v_max_f32_dpp v{T+1}, v{T+1}, v{T+1} row_ror:1 row_mask:0xf bank_mask:0xf")
    a(f"v_max_f32 v{T+1}, v{T+1}, v{M}")
    a(f"v_sub_f32 v{T+2}, v{M}, v{T+1}")
    a(f"v_sub_f32 v{T+3}, v{T}, v{T+1}")
    a(f"v_exp_f32 v{T+2}, v{T+2}")
    a(f"v_exp_f32 v{T+3}, v{T+3}")
    a(f"v_mov_b32 v{M}, v{T+1}")
    a(f"v_fma_f32 v{L}, v{L}, v{T+2}, v{T+3}")
    for j in range(8):
        a(f"ds_bpermute_b32 v{P+j}, v{BP+j}, v{T+3}")
    for j in range(8):
        a(f"v_mul_f32 v{ACC+j}, v{ACC+j}, v{T+2}")
    a("s_waitcnt lgkmcnt(0)")
    for j in range(8):
        a(f"s_waitcnt vmcnt({20 + 7 - j})")
        for r in range(4):
            w = VB[buf] + 4 * j + r
            a(f"v_lshlrev_b32 v{T+4}, 16, v{w}")
            a(f"v_and_b32 v{T+5}, 0xffff0000, v{w}")
            a(f"v_fmac_f32 v{ACC+2*r}, v{T+4}, v{P+j}")
            a(f"v_fmac_f32 v{ACC+2*r+1}, v{T+5}, v{P+j}")
    load_v(buf, 31)
    a(f"s_add_u32 s29, s29, {16*384}")
a("s_add_u32 s30, s30, 1")
a(f"s_cmp_lt_u32 s30, {NTILES//2}")
a("s_cbranch_scc1 L_attn_loop")
a("s_nop 1")
for sh in (8, 4, 2, 1):
    a(f"v_add_f32_dpp v{L}, v{L}, v{L} row_ror:{sh} row_mask:0xf bank_mask:0xf")
    a("s_nop 1")
a("s_lshl_b32 s31, s10, 2")
a(f"v_mov_b32 v{T}, s31")
a(f"ds_write_b32 v{T}, v{M}")
a(f"ds_write_b32 v{T}, v{L} offset:128")
a("s_mul_i32 s31, s10, 1536")
a(f"v_lshlrev_b32 v{T}, 5, v1")
a(f"v_add_u32 v{T}, s31, v{T}")
a("v_cmp_gt_u32 vcc, 48, v1")
a("s_and_saveexec_b64 s[32:33], vcc")
a(f"ds_write_b128 v{T}, v[{ACC}:{ACC+3}] offset:256")
a(f"ds_write_b128 v{T}, v[{ACC+4}:{ACC+7}] offset:272")
a("s_or_b64 exec, exec, s[32:33]")
a("s_waitcnt vmcnt(0) lgkmcnt(0)")
a("s_barrier")
a("v_cmp_gt_u32 vcc, 192, v0")
a("s_and_saveexec_b64 s[32:33], vcc")
a("s_cbranch_execz L_attn_done")
a(f"v_mov_b32 v{T}, 0")
for w in range(NW):
    a(f"ds_read_b32 v{12+w}, v{T} offset:{4*w}")
    a(f"ds_read_b32 v{12+NW+w}, v{T} offset:{128+4*w}")
a(f"v_lshlrev_b32 v{T+1}, 2, v0")
for w in range(NW):
    a(f"ds_read_b32 v{40+2*w}, v{T+1} offset:{256+1536*w}")
    a(f"ds_read_b32 v{41+2*w}, v{T+1} offset:{256+1536*w+768}")
a("s_waitcnt lgkmcnt(0)")
a(f"v_mov_b32 v{T+2}, v12")
for w in range(1, NW):
    a(f"v_max_f32 v{T+2}, v{T+2}, v{12+w}")
a(f"v_mov_b32 v{T+3}, 0")
a(f"v_mov_b32 v{T+4}, 0")
for w in range(NW):
    a(f"v_sub_f32 v{T+5}, v{12+w}, v{T+2}")
    a(f"v_exp_f32 v{T+5}, v{T+5}")
    a(f"v_add_f32 v{T+6}, v{40+2*w}, v{41+2*w}")
    a(f"v_fmac_f32 v{T+3}, v{T+5}, v{12+NW+w}")
    a(f"v_fmac_f32 v{T+4}, v{T+5}, v{T+6}")
a(f"s_lshl_b32 s31, s2, 10")
a(f"s_add_u32 s31, s31, {WS_PART}")
a(f"buffer_store_dword v{T+4}, v{T+1}, s[24:27], s31 offen")
a("v_cmp_eq_u32 vcc, 0, v0")
a("s_and_saveexec_b64 s[34:35], vcc")
a(f"buffer_store_dword v{T+2}, v{T+1}, s[24:27], s31 offen offset:768")
a(f"buffer_store_dword v{T+3}, v{T+1}, s[24:27], s31 offen offset:772")
a.label("L_attn_done")
a("s_endpgm")

a(".globl fin_kernel")
a(".p2align 8")
a(".type fin_kernel,@function")
a.label("fin_kernel")
a("s_cmp_ge_u32 s2, 170")
a("s_cbranch_scc1 L_fin_done")
a(f"s_load_dwordx2 s[4:5], s[0:1], {KA_X}")
a(f"s_load_dwordx2 s[6:7], s[0:1], {KA_WO}")
a(f"s_load_dwordx2 s[8:9], s[0:1], {KA_W2}")
a(f"s_load_dwordx2 s[10:11], s[0:1], {KA_B2}")
a(f"s_load_dwordx2 s[12:13], s[0:1], {KA_WS}")
a(f"s_load_dwordx2 s[14:15], s[0:1], {KA_OUT}")
a(f"s_load_dwordx2 s[44:45], s[0:1], {KA_DBG}")
a("s_waitcnt lgkmcnt(0)")
srd(a, 16, 4, 1280)
srd(a, 20, 12, WS_SIZE)
srd(a, 24, 6, 6144 * 1280)
srd(a, 28, 8, 1536 * 1280)
srd(a, 32, 10, 1280)
srd(a, 48, 14, 1280)
srd(a, 52, 44, 256)
a("s_cmp_ge_u32 s2, 160")
a("s_cbranch_scc1 L_fin_gate")
a("s_and_b32 s36, s2, 31")
a("s_lshr_b32 s37, s2, 5")
a("v_and_b32 v2, 15, v0")
a("v_lshrrev_b32 v3, 4, v0")
a("v_mul_u32_u24 v5, 1280, v3")
a("v_lshlrev_b32 v6, 4, v2")
a("v_add_u32 v5, v5, v6")
a(f"s_mul_i32 s38, s36, {192*1280}")
a("s_lshl_b32 s39, s37, 8")
a("s_add_u32 s38, s38, s39")
W = 60
gemv_loads(a, 12, 16, 1280, W, 5, 24, 38, 40)
a(f"s_lshl_b32 s41, s36, {10+LG}")
a(f"s_add_u32 s41, s41, {WS_PART}")
a("v_lshlrev_b32 v7, 2, v0")
a("v_mov_b32 v8, 0")
a("v_cmp_gt_u32 vcc, 192, v0")
a("s_and_saveexec_b64 s[42:43], vcc")
for c in range(NCHUNK):
    if c and c % 4 == 0:
        a("s_add_u32 s41, s41, 4096")
    a(f"buffer_load_dword v{10+c}, v7, s[20:23], s41 offen offset:{1024*(c%4)}")
    a(f"buffer_load_dwordx2 v[{20+2*c}:{21+2*c}], v8, s[20:23], s41 offen offset:{1024*(c%4)+768}")
a("s_waitcnt vmcnt(0)")
a("v_mov_b32 v40, v20")
for c in range(1, NCHUNK):
    a(f"v_max_f32 v40, v40, v{20+2*c}")
a("v_mov_b32 v41, 0")
a("v_mov_b32 v42, 0")
for c in range(NCHUNK):
    a(f"v_sub_f32 v43, v{20+2*c}, v40")
    a("v_exp_f32 v43, v43")
    a("s_nop 0")
    a(f"v_fmac_f32 v41, v43, v{21+2*c}")
    a(f"v_fmac_f32 v42, v43, v{10+c}")
a("v_rcp_f32 v43, v41")
a("s_nop 1")
a("v_fma_f32 v44, -v41, v43, 1.0")
a("v_fmac_f32 v43, v44, v43")
a("v_mul_f32 v42, v42, v43")
rbf(a, 42)
a("ds_write_b32 v7, v42")
a("s_or_b64 exec, exec, s[42:43]")
a("s_waitcnt lgkmcnt(0)")
a("s_barrier")
ACC3 = 120
for r in range(8):
    a(f"v_mov_b32 v{ACC3+r}, 0")
a("v_lshlrev_b32 v8, 2, v3")
gemv_fma(a, 12, 16, W, 130, 8, ACC3, 15, 16)
a("v_lshlrev_b32 v9, 9, v3")
a("v_lshlrev_b32 v15, 5, v2")
a("v_add_u32 v9, v9, v15")
gemv_reduce(a, 16, ACC3, 9, 7, 16, 150, 4096, 0, 42)
a("s_lshl_b32 s41, s37, 14")
a("s_lshl_b32 s39, s36, 9")
a("s_add_u32 s41, s41, s39")
a(f"s_add_u32 s41, s41, {WS_WOP}")
a("buffer_store_dword v16, v7, s[20:23], s41 offen sc1")
a("s_or_b64 exec, exec, s[42:43]")
a("s_branch L_fin_arrive")

a.label("L_fin_gate")
a("s_sub_u32 s36, s2, 160")
a("s_lshr_b32 s37, s36, 1")
a("v_and_b32 v2, 7, v0")
a("v_lshrrev_b32 v3, 3, v0")
a("v_mul_u32_u24 v5, 1280, v3")
a("v_lshlrev_b32 v6, 4, v2")
a("v_add_u32 v5, v5, v6")
a("s_lshl_b32 s38, s36, 7")
W = 60
gemv_loads(a, 24, 32, 1280, W, 5, 28, 38, 40, first=0)
a("v_lshlrev_b32 v7, 2, v0")
for i in range(3):
    a(f"s_mov_b32 s41, {WS_H}")
    a(f"buffer_load_dword v{10+i}, v7, s[20:23], s41 offen offset:{1024*i}")
a("s_waitcnt vmcnt(0)")
a("v_lshlrev_b32 v9, 3, v0")
for i in range(3):
    a(f"v_lshlrev_b32 v{20+2*i}, 16, v{10+i}")
    a(f"v_and_b32 v{21+2*i}, 0xffff0000, v{10+i}")
    a(f"ds_write_b64 v9, v[{20+2*i}:{21+2*i}] offset:{2048*i}")
a("s_waitcnt lgkmcnt(0)")
a("s_barrier")
ACC3 = 196
for r in range(8):
    a(f"v_mov_b32 v{ACC3+r}, 0")
a("v_lshlrev_b32 v8, 2, v3")
gemv_fma(a, 24, 32, W, 170, 8, ACC3, 15, 16, first=0)
gemv_loads(a, 24, 32, 1280, W, 5, 28, 38, 40, first=24)
gemv_fma(a, 24, 32, W, 170, 8, ACC3, 15, 16, first=24)
a("v_lshlrev_b32 v9, 8, v3")
a("v_lshlrev_b32 v15, 5, v2")
a("v_add_u32 v9, v9, v15")
gemv_reduce(a, 8, ACC3, 9, 7, 16, 170, 8192, 0, 42)
rbf(a, 16)
a("v_lshlrev_b32 v17, 1, v0")
a("buffer_load_ushort v18, v17, s[32:35], s38 offen")
a("s_waitcnt vmcnt(0)")
a("v_lshlrev_b32 v18, 16, v18")
a("v_add_f32 v16, v16, v18")
rbf(a, 16)
a(f"v_mul_f32 v18, {f32(-LOG2E)}, v16")
a("v_exp_f32 v18, v18")
a("s_nop 1")
a("v_add_f32 v18, 1.0, v18")
a("v_rcp_f32 v18, v18")
a("s_nop 1")
a("v_mul_f32 v16, v16, v18")
rbf(a, 16)
a("s_lshl_b32 s41, s36, 8")
a(f"s_add_u32 s41, s41, {WS_G}")
a("buffer_store_dword v16, v7, s[20:23], s41 offen sc1")
a("s_or_b64 exec, exec, s[42:43]")

a.label("L_fin_arrive")
a("s_waitcnt vmcnt(0)")
a("s_barrier")
a("v_mov_b32 v20, 0")
a("v_cmp_eq_u32 vcc, 0, v0")
a("s_and_saveexec_b64 s[42:43], vcc")
a("s_lshl_b32 s41, s37, 2")
a("v_mov_b32 v21, s41")
a("v_mov_b32 v22, 1")
a("buffer_atomic_add v22, v21, s[52:55], 0 offen sc0")
a("s_waitcnt vmcnt(0)")
a("ds_write_b32 v20, v22 offset:12288")
a("s_or_b64 exec, exec, s[42:43]")
a("s_waitcnt lgkmcnt(0)")
a("s_barrier")
a("ds_read_b32 v22, v20 offset:12288")
a("s_waitcnt lgkmcnt(0)")
a("v_readfirstlane_b32 s41, v22")
a("s_nop 3")
a("s_cmp_lg_u32 s41, 33")
a("s_cbranch_scc1 L_fin_done")
a("v_cmp_gt_u32 vcc, 128, v0")
a("s_and_saveexec_b64 s[42:43], vcc")
a("s_cbranch_execz L_fin_done")
a("v_lshlrev_b32 v7, 2, v0")
a("s_lshl_b32 s41, s37, 14")
a(f"s_add_u32 s41, s41, {WS_WOP}")
for hh in range(32):
    if hh % 8 == 0 and hh:
        a("s_add_u32 s41, s41, 4096")
    a(f"buffer_load_dword v{60+hh}, v7, s[20:23], s41 offen offset:{512*(hh%8)} sc1")
a("s_lshl_b32 s41, s37, 9")
a(f"s_add_u32 s41, s41, {WS_G}")
a("buffer_load_dword v20, v7, s[20:23], s41 offen sc1")
a("v_lshlrev_b32 v8, 1, v0")
a("s_lshl_b32 s41, s37, 8")
a("buffer_load_ushort v21, v8, s[16:19], s41 offen")
a("s_waitcnt vmcnt(0)")
a("v_mov_b32 v22, v60")
for hh in range(1, 32):
    a(f"v_add_f32 v22, v22, v{60+hh}")
rbf(a, 22)
a("v_mul_f32 v22, v22, v20")
rbf(a, 22)
a("v_lshlrev_b32 v21, 16, v21")
a("v_add_f32 v22, v22, v21")
a("v_cvt_pk_bf16_f32 v22, v22, v22")
a("buffer_store_short v22, v8, s[48:51], s41 offen")
a.label("L_fin_done")
a("s_endpgm")

out += a.text()
out += '.section .rodata,"a"\n'
for k, nv in (("prep_kernel", 208), ("attn_kernel", 192), ("fin_kernel", 208)):
    out += f""".p2align 6
.amdhsa_kernel {k}
  .amdhsa_next_free_vgpr {nv}
  .amdhsa_next_free_sgpr 64
  .amdhsa_accum_offset {nv}
  .amdhsa_group_segment_fixed_size 0
  .amdhsa_kernarg_size 104
  .amdhsa_user_sgpr_count 2
  .amdhsa_user_sgpr_kernarg_segment_ptr 1
  .amdhsa_system_sgpr_workgroup_id_x 1
.end_amdhsa_kernel
"""
open(OUT, "w").write(out)
print("wrote", OUT, len(out))
```

```python
import struct, sys, os, re, math

NAME = "recurrent_scan__gqa_block_cached__mixer_channel_mlp__decode"
OUT = os.environ.get("OUT", "cdna_kernels/%s.s" % NAME)
DIAG = os.environ.get("DIAG", "0") == "1"

NW = 8
NCHUNK = 8
SK = 8192
NT_HEAD = SK // 16

WS_Q = 0
WS_H = 16384
WS_CTR = 32768
WS_CG = WS_CTR + 32 * 256
WS_PART = 65536
WS_OUTP = WS_PART + 32 * NCHUNK * 1024
WS_SIZE = 402653184

KA_X, KA_K, KA_V, KA_WQ, KA_WO, KA_BX, KA_W1, KA_B1, KA_W2, KA_B2, KA_OUT, KA_DBG, KA_WS = [8 * i for i in range(13)]

L_RED = 0
L_ACC = 0
L_H = 30720
L_WM = 30976
L_O = 31104
L_FLAG = 31872
LDS_BYTES = 32000

def f32(x):
    return "0x%08x" % struct.unpack("<I", struct.pack("<f", x))[0]
LOG2E = 1.4426950408889634
for t in range(480):
    assert (t * 205) >> 11 == t // 10

class A:
    def __init__(self):
        self.l = []
    def __call__(self, s):
        for line in s.split("\n"):
            line = line.strip()
            m = re.search(r"offset:(\d+)", line)
            if m and line.startswith("buffer_"):
                assert int(m.group(1)) <= 4095, line
            if m and line.startswith("ds_"):
                assert int(m.group(1)) <= 65535, line
            self.l.append("    " + line)
    def label(self, s):
        self.l.append(s + ":")
    def text(self):
        return "\n".join(self.l) + "\n"

def srd(a, d, b, nbytes, add=None):
    if add is None:
        a(f"s_mov_b32 s{d}, s{b}")
        a(f"s_and_b32 s{d+1}, s{b+1}, 0xffff")
    else:
        a(f"s_add_u32 s{d}, s{b}, {add}")
        a(f"s_addc_u32 s{d+1}, s{b+1}, 0")
        a(f"s_and_b32 s{d+1}, s{d+1}, 0xffff")
    a(f"s_mov_b32 s{d+2}, {nbytes}")
    a(f"s_mov_b32 s{d+3}, 0x00020000")

def rbf(a, v):
    a(f"v_cvt_pk_bf16_f32 v{v}, v{v}, v{v}")
    a(f"v_lshlrev_b32 v{v}, 16, v{v}")

def wave_sum(a, v, s):
    a("s_nop 1")
    for sh in (1, 2, 4, 8):
        a(f"v_add_f32_dpp v{v}, v{v}, v{v} row_shr:{sh} row_mask:0xf bank_mask:0xf bound_ctrl:0")
        a("s_nop 1")
    a(f"v_add_f32_dpp v{v}, v{v}, v{v} row_bcast:15 row_mask:0xa bank_mask:0xf")
    a("s_nop 1")
    a(f"v_add_f32_dpp v{v}, v{v}, v{v} row_bcast:31 row_mask:0xc bank_mask:0xf")
    a("s_nop 1")
    a(f"v_readlane_b32 s{s}, v{v}, 63")
    a("s_nop 3")

def layernorm(a, e, t0, t1, t2, s):
    a(f"v_add_f32 v{t0}, v{e}, v{e+1}")
    for i in range(2, 10):
        a(f"v_add_f32 v{t0}, v{t0}, v{e+i}")
    wave_sum(a, t0, s)
    a(f"v_mov_b32 v{t1}, s{s}")
    a(f"v_mul_f32 v{t1}, {f32(1.0/640)}, v{t1}")
    a(f"v_mov_b32 v{t0}, 0")
    for i in range(10):
        a(f"v_sub_f32 v{t2}, v{e+i}, v{t1}")
        a(f"v_fmac_f32 v{t0}, v{t2}, v{t2}")
    wave_sum(a, t0, s)
    a(f"v_mov_b32 v{t0}, s{s}")
    a(f"v_mul_f32 v{t0}, {f32(1.0/640)}, v{t0}")
    rbf(a, t0)
    rbf(a, t1)
    a(f"v_add_f32 v{t0}, {f32(1e-5)}, v{t0}")
    rbf(a, t0)
    a(f"v_sqrt_f32 v{t0}, v{t0}")
    a("s_nop 1")
    rbf(a, t0)
    a(f"v_rcp_f32 v{t2}, v{t0}")
    a("s_nop 1")
    a(f"v_fma_f32 v{t0}, -v{t0}, v{t2}, 1.0")
    a(f"v_fmac_f32 v{t2}, v{t0}, v{t2}")
    for i in range(10):
        a(f"v_sub_f32 v{e+i}, v{e+i}, v{t1}")
        rbf(a, e + i)
        a(f"v_mul_f32 v{e+i}, v{e+i}, v{t2}")
        rbf(a, e + i)

def gemv_loads(a, npass, rg_per_pass, stride, w, voff, srdreg, sbase, stmp):
    for i in range(npass):
        off = i * rg_per_pass * stride
        if off == 0:
            a(f"buffer_load_dwordx4 v[{w+4*i}:{w+4*i+3}], v{voff}, s[{srdreg}:{srdreg+3}], s{sbase} offen")
        else:
            a(f"s_add_u32 s{stmp}, s{sbase}, {off}")
            a(f"buffer_load_dwordx4 v[{w+4*i}:{w+4*i+3}], v{voff}, s[{srdreg}:{srdreg+3}], s{stmp} offen")

def gemv_fma(a, npass, rg_per_pass, w, xr, vlds, acc, t0, t1):
    for i in range(npass):
        a(f"ds_read_b32 v{xr+i}, v{vlds} offset:{i*rg_per_pass*4}")
    a("s_waitcnt lgkmcnt(0)")
    for i in range(npass):
        a(f"s_waitcnt vmcnt({npass-1-i})")
        for r in range(4):
            a(f"v_lshlrev_b32 v{t0}, 16, v{w+4*i+r}")
            a(f"v_and_b32 v{t1}, 0xffff0000, v{w+4*i+r}")
            a(f"v_fmac_f32 v{acc+2*r}, v{t0}, v{xr+i}")
            a(f"v_fmac_f32 v{acc+2*r+1}, v{t1}, v{xr+i}")

def gemv_reduce(a, lpr, acc, vred_w, vred_r, res, t0, red_off, tid, sx):
    nrg = 256 // lpr
    a(f"ds_write_b128 v{vred_w}, v[{acc}:{acc+3}] offset:{red_off}")
    a(f"ds_write_b128 v{vred_w}, v[{acc+4}:{acc+7}] offset:{red_off+16}")
    a("s_waitcnt lgkmcnt(0)")
    a("s_barrier")
    a(f"v_cmp_gt_u32 vcc, {lpr*8}, v{tid}")
    a(f"s_and_saveexec_b64 s[{sx}:{sx+1}], vcc")
    for r in range(nrg):
        a(f"ds_read_b32 v{t0+r}, v{vred_r} offset:{red_off + r*lpr*32}")
    a("s_waitcnt lgkmcnt(0)")
    a(f"v_mov_b32 v{res}, v{t0}")
    for r in range(1, nrg):
        a(f"v_add_f32 v{res}, v{res}, v{t0+r}")

def stamp(i):
    if not DIAG:
        return
    a(f"s_cmp_lg_u32 s10, 0")
    a(f"s_cbranch_scc1 L_st{i}")
    a("s_memrealtime s[98:99]")
    a("s_waitcnt lgkmcnt(0)")
    a("s_lshl_b32 s100, s2, 6")
    a(f"s_add_u32 s100, s100, {(1<<20) + 8*i}")
    a("v_mov_b32 v128, s98")
    a("v_mov_b32 v129, s99")
    a("s_mov_b64 s[98:99], exec")
    a("s_mov_b64 exec, 1")
    a("buffer_store_dwordx2 v[128:129], off, s[24:27], s100")
    a("s_mov_b64 exec, s[98:99]")
    a.label(f"L_st{i}")

a = A()
hdr = open("cdna_kernels/%s.s.ref" % NAME).read().split("\n")
comment = [l for l in hdr if l.startswith(";") and "@launch" not in l and "Override launch" not in l and "grid=ceil" not in l]
out = "\n".join(comment) + "\n"
out += f"; @launch kernel=prep_kernel grid=(120,1,1) block=(256,1,1) lds=16384\n"
out += f"; @launch kernel=attn_kernel grid=({32*NCHUNK},1,1) block=({64*NW},1,1) lds={LDS_BYTES}\n"
out += '.amdgcn_target "amdgcn-amd-amdhsa--gfx950"\n.text\n'

a(".globl prep_kernel")
a(".p2align 8")
a(".type prep_kernel,@function")
a.label("prep_kernel")
a("s_cmp_ge_u32 s2, 120")
a("s_cbranch_scc1 L_prep_done")
a(f"s_load_dwordx2 s[4:5], s[0:1], {KA_X}")
a(f"s_load_dwordx2 s[6:7], s[0:1], {KA_WQ}")
a(f"s_load_dwordx2 s[8:9], s[0:1], {KA_W1}")
a(f"s_load_dwordx2 s[10:11], s[0:1], {KA_B1}")
a(f"s_load_dwordx2 s[12:13], s[0:1], {KA_WS}")
a("v_and_b32 v1, 63, v0")
a("v_and_b32 v2, 7, v0")
a("v_lshrrev_b32 v3, 3, v0")
a("v_lshlrev_b32 v4, 2, v1")
a("s_waitcnt lgkmcnt(0)")
srd(a, 16, 4, 1280)
srd(a, 20, 12, WS_SIZE)
srd(a, 24, 6, 640 * 12288)
srd(a, 28, 8, 640 * 3072)
srd(a, 32, 10, 3072)
for i in range(5):
    a(f"buffer_load_dword v{10+i}, v4, s[16:19], 0 offen offset:{256*i}")
a("s_cmp_ge_u32 s2, 96")
a("s_cbranch_scc1 L_prep_h")

def prep_path(is_h):
    stride = 3072 if is_h else 12288
    sreg = 28 if is_h else 24
    a(f"s_mov_b32 s36, {stride}")
    a("v_mul_lo_u32 v5, v3, s36")
    a("v_lshlrev_b32 v6, 4, v2")
    a("v_add_u32 v5, v5, v6")
    if is_h:
        a("s_sub_u32 s37, s2, 96")
        a("s_lshl_b32 s37, s37, 7")
    else:
        a("s_lshl_b32 s37, s2, 7")
    W = 40
    gemv_loads(a, 20, 32, stride, W, 5, sreg, 37, 38)
    if is_h:
        a("v_lshlrev_b32 v17, 1, v0")
        a("buffer_load_ushort v18, v17, s[32:35], s37 offen")
    else:
        pass
    NY = 1 if is_h else 0
    a(f"s_waitcnt vmcnt({20+NY})")
    E = 20
    for i in range(5):
        a(f"v_lshlrev_b32 v{E+2*i}, 16, v{10+i}")
        a(f"v_and_b32 v{E+2*i+1}, 0xffff0000, v{10+i}")
    layernorm(a, E, 15, 16, 19, 40)
    if is_h:
        layernorm(a, E, 15, 16, 19, 40)
    a("v_lshlrev_b32 v7, 3, v1")
    for i in range(5):
        a(f"ds_write_b64 v7, v[{E+2*i}:{E+2*i+1}] offset:{512*i}")
    a("s_waitcnt lgkmcnt(0)")
    a("s_barrier")
    ACC = 130
    for r in range(8):
        a(f"v_mov_b32 v{ACC+r}, 0")
    a("v_lshlrev_b32 v8, 2, v3")
    for i in range(20):
        a(f"ds_read_b32 v{140+i}, v8 offset:{i*32*4}")
    a("s_waitcnt lgkmcnt(0)")
    for i in range(20):
        a(f"s_waitcnt vmcnt({19+NY-i})")
        for r in range(4):
            a(f"v_lshlrev_b32 v15, 16, v{W+4*i+r}")
            a(f"v_and_b32 v16, 0xffff0000, v{W+4*i+r}")
            a(f"v_fmac_f32 v{ACC+2*r}, v15, v{140+i}")
            a(f"v_fmac_f32 v{ACC+2*r+1}, v16, v{140+i}")
    a("v_lshlrev_b32 v9, 8, v3")
    a("v_lshlrev_b32 v15, 5, v2")
    a("v_add_u32 v9, v9, v15")
    a("v_lshlrev_b32 v15, 2, v0")
    gemv_reduce(a, 8, ACC, 9, 15, 16, 170, 4096, 0, 44)
    rbf(a, 16)
    if is_h:
        a("s_waitcnt vmcnt(0)")
        a("v_lshlrev_b32 v18, 16, v18")
        a("v_add_f32 v16, v16, v18")
        rbf(a, 16)
        a("v_mul_f32 v18, v16, v16")
        a(f"v_mul_f32 v18, {f32(0.044715)}, v18")
        a("v_add_f32 v18, 1.0, v18")
        a("v_mul_f32 v18, v18, v16")
        a(f"v_mul_f32 v18, {f32(-2.0*0.7978845608028654*LOG2E)}, v18")
        a("v_exp_f32 v18, v18")
        a("s_nop 1")
        a("v_add_f32 v18, 1.0, v18")
        a("v_rcp_f32 v18, v18")
        a("s_nop 1")
        a("v_mul_f32 v16, v16, v18")
        a("v_cvt_pk_bf16_f32 v16, v16, v16")
        a(f"s_add_u32 s37, s37, {WS_H}")
        a("buffer_store_short v16, v17, s[20:23], s37 offen")
    else:
        a("v_cvt_pk_bf16_f32 v16, v16, v16")
        a("v_lshlrev_b32 v17, 1, v0")
        a("s_lshl_b32 s37, s2, 7")
        a(f"s_add_u32 s37, s37, {WS_Q}")
        a("buffer_store_short v16, v17, s[20:23], s37 offen")
        a("s_cmp_ge_u32 s2, 40")
        a("s_cbranch_scc1 L_nozero")
        a("v_mov_b32 v6, 0")
        a("v_lshlrev_b32 v7, 7, v0")
        a("v_cmp_gt_u32 vcc, 2, v0")
        a("s_and_b64 exec, exec, vcc")
        a("s_lshl_b32 s39, s2, 8")
        a(f"s_add_u32 s39, s39, {WS_CTR}")
        a("buffer_store_dword v6, v7, s[20:23], s39 offen")
        a.label("L_nozero")
    a("s_endpgm")

prep_path(False)
a.label("L_prep_h")
prep_path(True)
a.label("L_prep_done")
a("s_endpgm")

a(".globl attn_kernel")
a(".p2align 8")
a(".type attn_kernel,@function")
a.label("attn_kernel")
Q = 8
KB = 32
VB = 56
ACC = 88
M, L = 96, 97
T = 98
P = 104
D = 112
BP = 116
RG, C10, ONE, HV = 124, 125, 126, 127
NV = 128
a(f"s_cmp_ge_u32 s2, {32*NCHUNK}")
a("s_cbranch_scc1 L_done")
a(f"s_load_dwordx4 s[64:67], s[0:1], {KA_X}")
a(f"s_load_dwordx2 s[68:69], s[0:1], {KA_V}")
a(f"s_load_dwordx2 s[72:73], s[0:1], {KA_WO}")
a(f"s_load_dwordx4 s[80:83], s[0:1], {KA_W2}")
a(f"s_load_dwordx2 s[84:85], s[0:1], {KA_OUT}")
a(f"s_load_dwordx2 s[88:89], s[0:1], {KA_WS}")
a("v_lshrrev_b32 v1, 6, v0")
a("s_nop 0")
a("v_readfirstlane_b32 s10, v1")
a("v_and_b32 v1, 63, v0")
a("s_lshr_b32 s11, s2, 3")
a("s_and_b32 s12, s2, 7")
a("s_mul_i32 s13, s11, 3145728")
a("v_and_b32 v2, 15, v1")
a("v_mul_u32_u24 v2, 384, v2")
a("v_lshrrev_b32 v3, 4, v1")
a("v_lshlrev_b32 v3, 4, v3")
a("v_add_u32 v2, v2, v3")
a("v_lshlrev_b32 v4, 4, v1")
a("v_mov_b32 v5, 0x40000000")
a("v_cmp_gt_u32 vcc, 48, v1")
a("s_nop 1")
a("v_cndmask_b32 v4, v5, v4, vcc")
a("v_add_u32 v6, 3072, v4")
a("s_lshl_b32 s90, s12, 3")
a("s_add_u32 s90, s90, s10")
a(f"s_mul_i32 s90, s90, {16*384}")
a("s_mul_i32 s14, s11, 384")
a("s_lshl_b32 s96, s11, 8")
a(f"s_add_u32 s96, s96, {WS_CTR}")
a("s_waitcnt lgkmcnt(0)")
srd(a, 16, 66, 3145728, add="s13")
srd(a, 20, 68, 3145728, add="s13")
srd(a, 24, 88, WS_SIZE)
for j in range(6):
    a(f"buffer_load_dwordx4 v[{Q+4*j}:{Q+4*j+3}], v3, s[24:27], s14 offen offset:{64*j+WS_Q}")
def load_k(soff):
    for j in range(6):
        a(f"buffer_load_dwordx4 v[{KB+4*j}:{KB+4*j+3}], v2, s[16:19], s{soff} offen offset:{64*j} nt")
def load_v(soff):
    for j in range(8):
        vo = 4 if j < 4 else 6
        a(f"buffer_load_dwordx4 v[{VB+4*j}:{VB+4*j+3}], v{vo}, s[20:23], s{soff} offen offset:{768*(j%4)} nt")
def grab():
    a(f"v_mov_b32 v{ONE}, 1")
    a("v_cmp_eq_u32 vcc, 0, v1")
    a("s_and_saveexec_b64 s[92:93], vcc")
    a(f"buffer_atomic_add v{ONE}, off, s[24:27], s96 sc0")
    a("s_or_b64 exec, exec, s[92:93]")
load_k(90)
grab()
load_v(90)
stamp(0)
srd(a, 36, 64, 1280)
srd(a, 40, 72, 6144 * 1280)
srd(a, 44, 80, 1536 * 1280)
srd(a, 52, 82, 1280)
srd(a, 56, 84, 1280)
a("v_cmp_le_u32 vcc, 24, v1")
a("v_mov_b32 v5, 0")
a(f"v_mov_b32 v{T}, 4")
a("s_nop 1")
a(f"v_cndmask_b32 v5, v5, v{T}, vcc")
for j in range(8):
    a(f"v_add_u32 v{BP+j}, {8*j}, v5")
    a(f"v_mov_b32 v{ACC+j}, 0")
a(f"v_mov_b32 v{M}, 0xff800000")
a(f"v_mov_b32 v{L}, 0")
a(f"v_mul_u32_u24 v{T}, 205, v0")
a(f"v_lshrrev_b32 v{RG}, 11, v{T}")
a(f"v_mul_u32_u24 v{T}, 10, v{RG}")
a(f"v_sub_u32 v{C10}, v0, v{T}")
a(f"v_mul_u32_u24 v7, 1280, v{RG}")
a(f"v_lshlrev_b32 v{T}, 4, v{C10}")
a(f"v_add_u32 v7, v7, v{T}")
a(f"v_mov_b32 v{T}, 0x40000000")
a("v_cmp_gt_u32 vcc, 480, v0")
a("s_nop 1")
a(f"v_cndmask_b32 v7, v{T}, v7, vcc")

def tile_mid(last):
    npend = 6 if last else 7
    a("s_nop 4")
    a(f"v_cvt_pk_bf16_f32 v{T}, v{D}, v{D}")
    a(f"v_lshlrev_b32 v{T}, 16, v{T}")
    a(f"v_mul_f32 v{T}, {f32(192 ** -0.5)}, v{T}")
    rbf(a, T)
    a(f"v_mul_f32 v{T}, {f32(LOG2E)}, v{T}")
    a("s_nop 1")
    a(f"v_max_f32_dpp v{T+1}, v{T}, v{T} row_ror:8 row_mask:0xf bank_mask:0xf")
    a("s_nop 1")
    a(f"v_max_f32_dpp v{T+1}, v{T+1}, v{T+1} row_ror:4 row_mask:0xf bank_mask:0xf")
    a("s_nop 1")
    a(f"v_max_f32_dpp v{T+1}, v{T+1}, v{T+1} row_ror:2 row_mask:0xf bank_mask:0xf")
    a("s_nop 1")
    a(f"v_max_f32_dpp v{T+1}, v{T+1}, v{T+1} row_ror:1 row_mask:0xf bank_mask:0xf")
    a(f"v_max_f32 v{T+1}, v{T+1}, v{M}")
    a(f"v_sub_f32 v{T+2}, v{M}, v{T+1}")
    a(f"v_sub_f32 v{T+3}, v{T}, v{T+1}")
    a(f"v_exp_f32 v{T+2}, v{T+2}")
    a(f"v_exp_f32 v{T+3}, v{T+3}")
    a(f"v_mov_b32 v{M}, v{T+1}")
    a(f"v_fma_f32 v{L}, v{L}, v{T+2}, v{T+3}")
    for j in range(8):
        a(f"ds_bpermute_b32 v{P+j}, v{BP+j}, v{T+3}")
    for j in range(8):
        a(f"v_mul_f32 v{ACC+j}, v{ACC+j}, v{T+2}")
    a("s_waitcnt lgkmcnt(0)")
    for j in range(8):
        a(f"s_waitcnt vmcnt({npend + 7 - j})")
        for r in range(4):
            w = VB + 4 * j + r
            a(f"v_lshlrev_b32 v{T+4}, 16, v{w}")
            a(f"v_and_b32 v{T+5}, 0xffff0000, v{w}")
            a(f"v_fmac_f32 v{ACC+2*r}, v{T+4}, v{P+j}")
            a(f"v_fmac_f32 v{ACC+2*r+1}, v{T+5}, v{P+j}")

a.label("L_loop")
a("s_waitcnt vmcnt(9)")
for j in range(6):
    c = "0" if j == 0 else f"v[{D}:{D+3}]"
    a(f"v_mfma_f32_16x16x32_bf16 v[{D}:{D+3}], v[{Q+4*j}:{Q+4*j+3}], v[{KB+4*j}:{KB+4*j+3}], {c}")
a("s_waitcnt vmcnt(8)")
a(f"v_readfirstlane_b32 s91, v{ONE}")
a("s_nop 3")
a(f"s_add_u32 s91, s91, {8*NCHUNK}")
a(f"s_cmp_ge_u32 s91, {NT_HEAD}")
a("s_cbranch_scc1 L_last")
a(f"s_mul_i32 s91, s91, {16*384}")
load_k(91)
grab()
tile_mid(False)
load_v(91)
a("s_branch L_loop")
a.label("L_last")
a(f"s_mul_i32 s14, s11, {192*1280}")
a("s_mul_i32 s15, s12, 160")
a("s_add_u32 s14, s14, s15")
for i in range(4):
    a(f"buffer_load_dwordx4 v[{KB+4*i}:{KB+4*i+3}], v7, s[40:43], s14 offen")
    a(f"s_add_u32 s14, s14, {48*1280}")
a(f"s_mul_i32 s14, s11, {48*1280}")
a("s_add_u32 s14, s14, s15")
a(f"buffer_load_dwordx4 v[{KB+16}:{KB+19}], v7, s[44:47], s14 offen")
a(f"v_lshlrev_b32 v{HV}, 1, v{RG}")
a("s_mul_i32 s14, s11, 96")
a(f"s_add_u32 s14, s14, {WS_H}")
a(f"buffer_load_ushort v{HV}, v{HV}, s[24:27], s14 offen")
tile_mid(True)
stamp(3)
a("s_nop 1")
for sh in (8, 4, 2, 1):
    a(f"v_add_f32_dpp v{L}, v{L}, v{L} row_ror:{sh} row_mask:0xf bank_mask:0xf")
    a("s_nop 1")
a("s_lshl_b32 s14, s10, 2")
a(f"v_mov_b32 v{T}, s14")
a(f"ds_write_b32 v{T}, v{M} offset:{L_WM}")
a(f"ds_write_b32 v{T}, v{L} offset:{L_WM+64}")
a("s_mul_i32 s14, s10, 1536")
a(f"v_lshlrev_b32 v{T}, 5, v1")
a(f"v_add_u32 v{T}, s14, v{T}")
a("v_cmp_gt_u32 vcc, 48, v1")
a("s_and_saveexec_b64 s[92:93], vcc")
a(f"ds_write_b128 v{T}, v[{ACC}:{ACC+3}] offset:{L_ACC}")
a(f"ds_write_b128 v{T}, v[{ACC+4}:{ACC+7}] offset:{L_ACC+16}")
a("s_or_b64 exec, exec, s[92:93]")
a("s_waitcnt lgkmcnt(0)")
a("s_barrier")
R = VB
a("v_cmp_gt_u32 vcc, 192, v0")
a("s_and_saveexec_b64 s[92:93], vcc")
a("s_cbranch_execz L_rec_done")
a(f"v_mov_b32 v{T}, 0")
a(f"v_lshlrev_b32 v{T+1}, 2, v0")
for w in range(NW):
    a(f"ds_read_b32 v{R+w}, v{T} offset:{L_WM+4*w}")
    a(f"ds_read_b32 v{R+8+w}, v{T} offset:{L_WM+64+4*w}")
    a(f"ds_read_b32 v{R+16+2*w}, v{T+1} offset:{L_ACC+1536*w}")
    a(f"ds_read_b32 v{R+17+2*w}, v{T+1} offset:{L_ACC+1536*w+768}")
a("s_waitcnt lgkmcnt(0)")
a(f"v_mov_b32 v{T+2}, v{R}")
for w in range(1, NW):
    a(f"v_max_f32 v{T+2}, v{T+2}, v{R+w}")
a(f"v_mov_b32 v{T+3}, 0")
a(f"v_mov_b32 v{T+4}, 0")
for w in range(NW):
    a(f"v_sub_f32 v{T+5}, v{R+w}, v{T+2}")
    a(f"v_exp_f32 v{T+5}, v{T+5}")
    a(f"v_add_f32 v{P}, v{R+16+2*w}, v{R+17+2*w}")
    a(f"v_fmac_f32 v{T+3}, v{T+5}, v{R+8+w}")
    a(f"v_fmac_f32 v{T+4}, v{T+5}, v{P}")
a("s_lshl_b32 s14, s2, 10")
a(f"s_add_u32 s14, s14, {WS_PART}")
a(f"buffer_store_dword v{T+4}, v{T+1}, s[24:27], s14 offen sc1")
a("v_cmp_eq_u32 vcc, 0, v0")
a("s_and_saveexec_b64 s[100:101], vcc")
a(f"buffer_store_dword v{T+2}, v{T+1}, s[24:27], s14 offen offset:768 sc1")
a(f"buffer_store_dword v{T+3}, v{T+1}, s[24:27], s14 offen offset:772 sc1")
a.label("L_rec_done")
a("s_mov_b64 exec, -1")
a("s_waitcnt vmcnt(0)")
a("s_barrier")
stamp(4)
a("s_cmp_lg_u32 s10, 0")
a("s_cbranch_scc1 L_poll_done")
a(f"v_mov_b32 v{T+1}, 1")
a("v_cmp_eq_u32 vcc, 0, v0")
a("s_and_saveexec_b64 s[92:93], vcc")
a(f"buffer_atomic_add v{T+1}, off, s[24:27], s96 offset:128")
a("s_or_b64 exec, exec, s[92:93]")
a("s_mov_b32 s15, 0")
a.label("L_poll")
a(f"buffer_load_dword v{T+1}, off, s[24:27], s96 offset:128 sc1")
a("s_waitcnt vmcnt(0)")
a(f"v_readfirstlane_b32 s14, v{T+1}")
a("s_nop 3")
a(f"s_cmp_ge_u32 s14, {NCHUNK}")
a("s_cbranch_scc1 L_poll_done")
a("s_sleep 2")
a("s_add_u32 s15, s15, 1")
a("s_cmp_lt_u32 s15, 0x400000")
a("s_cbranch_scc1 L_poll")
a.label("L_poll_done")
a("s_barrier")
stamp(5)
a("v_cmp_gt_u32 vcc, 192, v0")
a("s_and_saveexec_b64 s[92:93], vcc")
a("s_cbranch_execz L_o_done")
a("s_lshl_b32 s14, s11, 13")
a(f"s_add_u32 s14, s14, {WS_PART}")
a(f"v_lshlrev_b32 v{T+1}, 2, v0")
a(f"v_mov_b32 v{T}, 0")
for c in range(NCHUNK):
    if c and c % 4 == 0:
        a("s_add_u32 s14, s14, 4096")
    a(f"buffer_load_dword v{R+c}, v{T+1}, s[24:27], s14 offen offset:{1024*(c%4)} sc1")
    a(f"buffer_load_dwordx2 v[{R+8+2*c}:{R+9+2*c}], v{T}, s[24:27], s14 offen offset:{1024*(c%4)+768} sc1")
a("s_waitcnt vmcnt(0)")
a(f"v_mov_b32 v{T+2}, v{R+8}")
for c in range(1, NCHUNK):
    a(f"v_max_f32 v{T+2}, v{T+2}, v{R+8+2*c}")
a(f"v_mov_b32 v{T+3}, 0")
a(f"v_mov_b32 v{T+4}, 0")
for c in range(NCHUNK):
    a(f"v_sub_f32 v{T+5}, v{R+8+2*c}, v{T+2}")
    a(f"v_exp_f32 v{T+5}, v{T+5}")
    a("s_nop 0")
    a(f"v_fmac_f32 v{T+3}, v{T+5}, v{R+9+2*c}")
    a(f"v_fmac_f32 v{T+4}, v{T+5}, v{R+c}")
a(f"v_rcp_f32 v{T+5}, v{T+3}")
a("s_nop 1")
a(f"v_fma_f32 v{T+2}, -v{T+3}, v{T+5}, 1.0")
a(f"v_fmac_f32 v{T+5}, v{T+2}, v{T+5}")
a(f"v_mul_f32 v{T+4}, v{T+4}, v{T+5}")
rbf(a, T + 4)
a(f"ds_write_b32 v{T+1}, v{T+4} offset:{L_O}")
a.label("L_o_done")
a("s_mov_b64 exec, -1")
a("s_waitcnt lgkmcnt(0)")
a("s_barrier")
a(f"v_lshlrev_b32 v5, 2, v{RG}")
for i in range(4):
    a(f"ds_read_b32 v{R+i}, v5 offset:{L_O + 48*4*i}")
for r in range(8):
    a(f"v_mov_b32 v{ACC+r}, 0")
a("s_waitcnt vmcnt(0) lgkmcnt(0)")
a(f"v_lshlrev_b32 v{HV}, 16, v{HV}")
for i in range(4):
    for r in range(4):
        a(f"v_lshlrev_b32 v{T+4}, 16, v{KB+4*i+r}")
        a(f"v_and_b32 v{T+5}, 0xffff0000, v{KB+4*i+r}")
        a(f"v_fmac_f32 v{ACC+2*r}, v{T+4}, v{R+i}")
        a(f"v_fmac_f32 v{ACC+2*r+1}, v{T+5}, v{R+i}")
for r in range(4):
    a(f"v_lshlrev_b32 v{T+4}, 16, v{KB+16+r}")
    a(f"v_and_b32 v{T+5}, 0xffff0000, v{KB+16+r}")
    a(f"v_mul_f32 v{P+2*r}, v{T+4}, v{HV}")
    a(f"v_mul_f32 v{P+2*r+1}, v{T+5}, v{HV}")
a(f"v_mul_u32_u24 v5, 640, v{RG}")
a(f"v_lshlrev_b32 v{T}, 5, v{C10}")
a(f"v_add_u32 v5, v5, v{T}")
a("v_cmp_gt_u32 vcc, 480, v0")
a("s_and_saveexec_b64 s[92:93], vcc")
a(f"ds_write_b128 v5, v[{ACC}:{ACC+3}] offset:{L_RED}")
a(f"ds_write_b128 v5, v[{ACC+4}:{ACC+7}] offset:{L_RED+16}")
a(f"ds_write_b128 v5, v[{P}:{P+3}] offset:{L_RED+320}")
a(f"ds_write_b128 v5, v[{P+4}:{P+7}] offset:{L_RED+336}")
a("s_or_b64 exec, exec, s[92:93]")
a("s_waitcnt lgkmcnt(0)")
a("s_barrier")
a("v_cmp_gt_u32 vcc, 160, v0")
a("s_and_saveexec_b64 s[92:93], vcc")
a("s_cbranch_execz L_outp_done")
a("v_lshlrev_b32 v5, 2, v0")
for blk in range(2):
    for r in range(24):
        a(f"ds_read_b32 v{R+r}, v5 offset:{L_RED + (blk*24+r)*640}")
    a("s_waitcnt lgkmcnt(0)")
    for r in range(24):
        if blk == 0 and r == 0:
            a(f"v_mov_b32 v{T}, v{R}")
        else:
            a(f"v_add_f32 v{T}, v{T}, v{R+r}")
a("s_mul_i32 s14, s12, 20480")
a("s_mul_i32 s15, s11, 640")
a("s_add_u32 s14, s14, s15")
a(f"s_add_u32 s14, s14, {WS_OUTP}")
a(f"buffer_store_dword v{T}, v5, s[24:27], s14 offen sc1")
a.label("L_outp_done")
a("s_mov_b64 exec, -1")
a("s_waitcnt vmcnt(0)")
a("s_barrier")
stamp(6)
a(f"v_mov_b32 v{T}, 0")
a("v_cmp_eq_u32 vcc, 0, v0")
a("s_and_saveexec_b64 s[92:93], vcc")
a("s_lshl_b32 s14, s12, 8")
a(f"s_add_u32 s14, s14, {WS_CG}")
a(f"v_mov_b32 v{T+2}, 1")
a(f"buffer_atomic_add v{T+2}, off, s[24:27], s14 sc0")
a("s_waitcnt vmcnt(0)")
a(f"ds_write_b32 v{T}, v{T+2} offset:{L_FLAG}")
a("s_or_b64 exec, exec, s[92:93]")
a("s_waitcnt lgkmcnt(0)")
a("s_barrier")
a(f"ds_read_b32 v{T+2}, v{T} offset:{L_FLAG}")
a("s_waitcnt lgkmcnt(0)")
a(f"v_readfirstlane_b32 s14, v{T+2}")
a("s_nop 3")
a("s_cmp_lg_u32 s14, 31")
a("s_cbranch_scc1 L_done")
a("v_cmp_gt_u32 vcc, 160, v0")
a("s_and_saveexec_b64 s[92:93], vcc")
a("v_lshlrev_b32 v5, 2, v0")
a("s_mul_i32 s14, s12, 20480")
a(f"s_add_u32 s14, s14, {WS_OUTP}")
for hh in range(32):
    if hh and hh % 4 == 0:
        a("s_add_u32 s14, s14, 2560")
    a(f"buffer_load_dword v{KB+hh}, v5, s[24:27], s14 offen offset:{640*(hh%4)} sc1")
a(f"v_subrev_u32 v{T+1}, 80, v0")
a("v_cmp_gt_u32 vcc, 80, v0")
a("s_nop 1")
a(f"v_cndmask_b32 v{T+1}, v{T+1}, v0, vcc")
a(f"v_lshlrev_b32 v{T+1}, 1, v{T+1}")
a("s_mul_i32 s15, s12, 160")
a(f"buffer_load_ushort v{T+2}, v{T+1}, s[36:39], s15 offen")
a(f"buffer_load_ushort v{T+3}, v{T+1}, s[52:55], s15 offen")
a("s_waitcnt vmcnt(0)")
a(f"v_mov_b32 v{T}, v{KB}")
for hh in range(1, 32):
    a(f"v_add_f32 v{T}, v{T}, v{KB+hh}")
rbf(a, T)
a(f"v_lshlrev_b32 v{T+3}, 16, v{T+3}")
a(f"v_add_f32 v{T+4}, v{T}, v{T+3}")
rbf(a, T + 4)
a(f"v_mul_f32 v{T+5}, {f32(-LOG2E)}, v{T+4}")
a(f"v_exp_f32 v{T+5}, v{T+5}")
a("s_nop 1")
a(f"v_add_f32 v{T+5}, 1.0, v{T+5}")
a(f"v_rcp_f32 v{T+5}, v{T+5}")
a("s_nop 1")
a(f"v_mul_f32 v{T+4}, v{T+4}, v{T+5}")
rbf(a, T + 4)
a(f"ds_write_b32 v5, v{T+4} offset:{L_RED}")
a("s_or_b64 exec, exec, s[92:93]")
a("s_waitcnt lgkmcnt(0)")
a("s_barrier")
a("v_cmp_gt_u32 vcc, 80, v0")
a("s_and_saveexec_b64 s[92:93], vcc")
a("s_cbranch_execz L_done")
a(f"ds_read_b32 v{T+4}, v5 offset:{L_RED+320}")
a("s_waitcnt lgkmcnt(0)")
a(f"v_mul_f32 v{T}, v{T}, v{T+4}")
rbf(a, T)
a(f"v_lshlrev_b32 v{T+2}, 16, v{T+2}")
a(f"v_add_f32 v{T}, v{T}, v{T+2}")
a(f"v_cvt_pk_bf16_f32 v{T}, v{T}, v{T}")
a(f"buffer_store_short v{T}, v{T+1}, s[56:59], s15 offen")
a("s_mov_b64 exec, -1")
stamp(7)
a.label("L_done")
a("s_endpgm")

out += a.text()
out += '.section .rodata,"a"\n'
for k, nv in (("prep_kernel", 208), ("attn_kernel", 130 if DIAG else NV)):
    out += f""".p2align 6
.amdhsa_kernel {k}
  .amdhsa_next_free_vgpr {nv}
  .amdhsa_next_free_sgpr 102
  .amdhsa_accum_offset {(nv+3)//4*4}
  .amdhsa_group_segment_fixed_size 0
  .amdhsa_kernarg_size 104
  .amdhsa_user_sgpr_count 2
  .amdhsa_user_sgpr_kernarg_segment_ptr 1
  .amdhsa_system_sgpr_workgroup_id_x 1
.end_amdhsa_kernel
"""
open(OUT, "w").write(out)
print("wrote", OUT, len(out))
```

```python
import struct, sys, os, re, math

NAME = "recurrent_scan__gqa_block_cached__mixer_channel_mlp__decode"
OUT = os.environ.get("OUT", "cdna_kernels/%s.s" % NAME)
DIAG = os.environ.get("DIAG", "0") == "1"

NW = 8
NCHUNK = 8
SK = 8192
NT_HEAD = SK // 16
NSTAT = 3 * NW * NCHUNK

WS_CTR = 0
WS_CG = 32 * 256
WS_PART = 65536
WS_OUTP = WS_PART + 32 * NCHUNK * 1024
WS_QP = WS_OUTP + 8 * 32 * 640
WS_SIZE = 402653184

KA_X, KA_K, KA_V, KA_WQ, KA_WO, KA_BX, KA_W1, KA_B1, KA_W2, KA_B2, KA_OUT, KA_DBG, KA_WS = [8 * i for i in range(13)]

L_XN = 0
L_Y = 2560
L_RED = 5120
L_ACC = 5120
L_Q = 35840
L_H = 36224
L_WM = 36416
L_O = 36544
L_FLAG = 37312
L_T2 = 37376
LDS_BYTES = L_T2 + NW * 12288

def f32(x):
    return "0x%08x" % struct.unpack("<I", struct.pack("<f", x))[0]
LOG2E = 1.4426950408889634
for t in range(480):
    assert (t * 171) >> 12 == t // 24 and (t * 171) >> 10 == t // 6 and (t * 205) >> 11 == t // 10

class A:
    def __init__(self):
        self.l = []
    def __call__(self, s):
        for line in s.split("\n"):
            line = line.strip()
            m = re.search(r"offset:(\d+)", line)
            if m and line.startswith("buffer_"):
                assert int(m.group(1)) <= 4095, line
            if m and line.startswith("ds_"):
                assert int(m.group(1)) <= 65535, line
            self.l.append("    " + line)
    def label(self, s):
        self.l.append(s + ":")
    def text(self):
        return "\n".join(self.l) + "\n"

def srd(a, d, b, nbytes, add=None):
    if add is None:
        a(f"s_mov_b32 s{d}, s{b}")
        a(f"s_and_b32 s{d+1}, s{b+1}, 0xffff")
    else:
        a(f"s_add_u32 s{d}, s{b}, {add}")
        a(f"s_addc_u32 s{d+1}, s{b+1}, 0")
        a(f"s_and_b32 s{d+1}, s{d+1}, 0xffff")
    a(f"s_mov_b32 s{d+2}, {nbytes}")
    a(f"s_mov_b32 s{d+3}, 0x00020000")

def rbf(a, v):
    a(f"v_cvt_pk_bf16_f32 v{v}, v{v}, v{v}")
    a(f"v_lshlrev_b32 v{v}, 16, v{v}")

def wave_sum(a, v, s):
    a("s_nop 1")
    for sh in (1, 2, 4, 8):
        a(f"v_add_f32_dpp v{v}, v{v}, v{v} row_shr:{sh} row_mask:0xf bank_mask:0xf bound_ctrl:0")
        a("s_nop 1")
    a(f"v_add_f32_dpp v{v}, v{v}, v{v} row_bcast:15 row_mask:0xa bank_mask:0xf")
    a("s_nop 1")
    a(f"v_add_f32_dpp v{v}, v{v}, v{v} row_bcast:31 row_mask:0xc bank_mask:0xf")
    a("s_nop 1")
    a(f"v_readlane_b32 s{s}, v{v}, 63")
    a("s_nop 3")

def layernorm(a, e, t0, t1, t2, s):
    a(f"v_add_f32 v{t0}, v{e}, v{e+1}")
    for i in range(2, 10):
        a(f"v_add_f32 v{t0}, v{t0}, v{e+i}")
    wave_sum(a, t0, s)
    a(f"v_mov_b32 v{t1}, s{s}")
    a(f"v_mul_f32 v{t1}, {f32(1.0/640)}, v{t1}")
    a(f"v_mov_b32 v{t0}, 0")
    for i in range(10):
        a(f"v_sub_f32 v{t2}, v{e+i}, v{t1}")
        a(f"v_fmac_f32 v{t0}, v{t2}, v{t2}")
    wave_sum(a, t0, s)
    a(f"v_mov_b32 v{t0}, s{s}")
    a(f"v_mul_f32 v{t0}, {f32(1.0/640)}, v{t0}")
    rbf(a, t0)
    rbf(a, t1)
    a(f"v_add_f32 v{t0}, {f32(1e-5)}, v{t0}")
    rbf(a, t0)
    a(f"v_sqrt_f32 v{t0}, v{t0}")
    a("s_nop 1")
    rbf(a, t0)
    a(f"v_rcp_f32 v{t2}, v{t0}")
    a("s_nop 1")
    a(f"v_fma_f32 v{t0}, -v{t0}, v{t2}, 1.0")
    a(f"v_fmac_f32 v{t2}, v{t0}, v{t2}")
    for i in range(10):
        a(f"v_sub_f32 v{e+i}, v{e+i}, v{t1}")
        rbf(a, e + i)
        a(f"v_mul_f32 v{e+i}, v{e+i}, v{t2}")
        rbf(a, e + i)

def stamp(i):
    if not DIAG:
        return
    a(f"s_cmp_lg_u32 s10, 0")
    a(f"s_cbranch_scc1 L_st{i}")
    a("s_memrealtime s[4:5]")
    a("s_waitcnt lgkmcnt(0)")
    a("s_lshl_b32 s6, s2, 6")
    a(f"s_add_u32 s6, s6, {(1<<20) + 8*i}")
    a("v_mov_b32 v252, s4")
    a("v_mov_b32 v253, s5")
    a("s_mov_b64 s[4:5], exec")
    a("s_mov_b64 exec, 1")
    a("buffer_store_dwordx2 v[252:253], off, s[24:27], s6")
    a("s_mov_b64 exec, s[4:5]")
    a.label(f"L_st{i}")

a = A()
hdr = open("cdna_kernels/%s.s.ref" % NAME).read().split("\n")
comment = [l for l in hdr if l.startswith(";") and "@launch" not in l]
out = "\n".join(comment) + "\n"
out += f"; @launch grid=({32*NCHUNK},1,1) block=({64*NW},1,1) lds={LDS_BYTES}\n"
out += '.amdgcn_target "amdgcn-amd-amdhsa--gfx950"\n.text\n'
KN = NAME + "_kernel"
a(f".globl {KN}")
a(".p2align 8")
a(f".type {KN},@function")
a.label(KN)

Q = 8
KBUF = [32, 88]
VBUF = [56, 112]
ACC = 144
M, L = 152, 153
T = 154
P = 160
D = 168
BP = 172
RG, C24, HV, FLATV = 180, 181, 184, 185
AT = [182, 183]
W1V, RG6A, C6 = 186, 187, D + 3
WS0 = 188
NSLOT = 16
WQR = [WS0 + 4 * i for i in range(NSLOT)]
NV = WS0 + 4 * NSLOT
QA = ACC
XV = P
TT0, TT1 = T, T + 1

a(f"s_cmp_ge_u32 s2, {32*NCHUNK}")
a("s_cbranch_scc1 L_done")
a(f"s_load_dwordx4 s[64:67], s[0:1], {KA_X}")
a(f"s_load_dwordx4 s[68:71], s[0:1], {KA_V}")
a(f"s_load_dwordx2 s[72:73], s[0:1], {KA_WO}")
a(f"s_load_dwordx4 s[76:79], s[0:1], {KA_W1}")
a(f"s_load_dwordx4 s[80:83], s[0:1], {KA_W2}")
a(f"s_load_dwordx4 s[84:87], s[0:1], {KA_OUT}")
a(f"s_load_dwordx2 s[88:89], s[0:1], {KA_WS}")
a("v_lshrrev_b32 v1, 6, v0")
a("s_nop 0")
a("v_readfirstlane_b32 s10, v1")
a("v_and_b32 v1, 63, v0")
a("s_lshr_b32 s11, s2, 3")
a("s_and_b32 s12, s2, 7")
a("s_mul_i32 s13, s11, 3145728")
a("v_and_b32 v2, 15, v1")
a("v_mul_u32_u24 v2, 384, v2")
a("v_lshrrev_b32 v3, 4, v1")
a("v_lshlrev_b32 v3, 4, v3")
a("v_add_u32 v2, v2, v3")
a(f"v_lshlrev_b32 v{FLATV}, 4, v1")
a("v_mov_b32 v5, 0x40000000")
a("v_cmp_gt_u32 vcc, 48, v1")
a("s_nop 1")
a(f"v_cndmask_b32 v4, v5, v{FLATV}, vcc")
a("v_add_u32 v6, 3072, v4")
a(f"v_mul_u32_u24 v{TT0}, 171, v0")
a(f"v_lshrrev_b32 v{RG}, 12, v{TT0}")
a(f"v_mul_u32_u24 v{TT1}, 24, v{RG}")
a(f"v_sub_u32 v{C24}, v0, v{TT1}")
a(f"v_lshrrev_b32 v{TT0}, 10, v{TT0}")
a(f"v_mul_u32_u24 v{TT1}, 6, v{TT0}")
a(f"v_sub_u32 v{C6}, v0, v{TT1}")
a(f"v_mul_u32_u24 v{W1V}, 3072, v{TT0}")
a(f"v_lshlrev_b32 v{TT1}, 4, v{C6}")
a(f"v_add_u32 v{W1V}, v{W1V}, v{TT1}")
a(f"v_lshlrev_b32 v{RG6A}, 2, v{TT0}")
a("s_mov_b32 s14, 12288")
a(f"v_mul_lo_u32 v7, v{RG}, s14")
a(f"v_lshlrev_b32 v{TT1}, 4, v{C24}")
a(f"v_add_u32 v7, v7, v{TT1}")
a("v_mov_b32 v5, 0x40000000")
a("v_cmp_gt_u32 vcc, 480, v0")
a("s_nop 1")
a("v_cndmask_b32 v7, v5, v7, vcc")
a(f"v_cndmask_b32 v{W1V}, v5, v{W1V}, vcc")
a("s_lshl_b32 s90, s12, 3")
a("s_add_u32 s90, s90, s10")
a(f"s_mul_i32 s90, s90, {16*384}")
a("s_lshl_b32 s96, s11, 8")
a(f"s_add_u32 s96, s96, {WS_CTR}")
a("s_waitcnt lgkmcnt(0)")
srd(a, 36, 64, 1280)
srd(a, 16, 66, 3145728, add="s13")
srd(a, 20, 68, 3145728, add="s13")
srd(a, 28, 70, 640 * 12288)
srd(a, 32, 76, 640 * 3072)
srd(a, 24, 88, WS_SIZE)
srd(a, 60, 86, 256)
stamp(0)
XR = Q + 18
E = Q
a("v_lshlrev_b32 v5, 2, v1")
for i in range(5):
    a(f"buffer_load_dword v{XR+i}, v5, s[36:39], 0 offen offset:{256*i}")
a("s_cmp_lg_u32 s10, 0")
a("s_cbranch_scc1 L_init_done")
a(f"v_mov_b32 v{TT0}, 0")
a(f"v_lshlrev_b32 v{TT1}, 6, v1")
a("s_cmp_lg_u32 s12, 0")
a("s_cbranch_scc1 L_init_cg")
a("v_cmp_eq_u32 vcc, 0, v1")
a(f"v_mov_b32 v{TT0+3}, 0x1000")
a("s_nop 0")
a(f"v_cndmask_b32 v{TT0+3}, v{TT0}, v{TT0+3}, vcc")
a("v_cmp_gt_u32 vcc, 3, v1")
a("s_and_saveexec_b64 s[92:93], vcc")
a(f"buffer_store_dword v{TT0+3}, v{TT1}, s[24:27], s96 offen sc1")
a("s_mov_b64 exec, -1")
a("s_waitcnt vmcnt(0)")
a("s_lshl_b32 s14, s11, 2")
a(f"v_mov_b32 v{TT1}, s14")
a(f"v_mov_b32 v{TT0+2}, 1")
a("v_cmp_eq_u32 vcc, 0, v1")
a("s_and_saveexec_b64 s[92:93], vcc")
a(f"buffer_atomic_add v{TT0+2}, v{TT1}, s[60:63], 0 offen")
a("s_mov_b64 exec, -1")
a.label("L_init_cg")
a("s_cmp_lg_u32 s11, 0")
a("s_cbranch_scc1 L_init_done")
a("s_lshl_b32 s14, s12, 8")
a(f"s_add_u32 s14, s14, {WS_CG}")
a("v_cmp_eq_u32 vcc, 0, v1")
a("s_and_saveexec_b64 s[92:93], vcc")
a(f"buffer_store_dword v{TT0}, off, s[24:27], s14 sc1")
a("s_waitcnt vmcnt(0)")
a("s_lshl_b32 s14, s12, 2")
a("s_add_u32 s14, s14, 128")
a(f"v_mov_b32 v{TT1}, s14")
a(f"v_mov_b32 v{TT0+2}, 1")
a(f"buffer_atomic_add v{TT0+2}, v{TT1}, s[60:63], 0 offen")
a("s_mov_b64 exec, -1")
a.label("L_init_done")
a("s_mul_i32 s14, s11, 384")
a(f"s_mul_i32 s15, s12, {80*12288}")
a("s_add_u32 s14, s14, s15")
a("s_mul_i32 s95, s11, 96")
a(f"s_mul_i32 s15, s12, {80*3072}")
a("s_add_u32 s15, s95, s15")
for i in range(4):
    if i:
        a(f"s_add_u32 s14, s14, {20*12288}")
    a(f"buffer_load_dwordx4 v[{WQR[i]}:{WQR[i]+3}], v7, s[28:31], s14 offen")
a(f"buffer_load_dwordx4 v[{WQR[4]}:{WQR[4]+3}], v{W1V}, s[32:35], s15 offen")
def k_ins(buf, soff):
    return [f"buffer_load_dwordx4 v[{KBUF[buf]+4*j}:{KBUF[buf]+4*j+3}], v2, s[16:19], s{soff} offen offset:{64*j} nt" for j in range(6)]
def v_ins(buf, soff):
    return [f"buffer_load_dwordx4 v[{VBUF[buf]+4*j}:{VBUF[buf]+4*j+3}], v{4 if j < 4 else 6}, s[20:23], s{soff} offen offset:{768*(j%4)} nt" for j in range(8)]
def load_k(buf, soff):
    for l in k_ins(buf, soff):
        a(l)
def load_v(buf, soff):
    for l in v_ins(buf, soff):
        a(l)
a(f"s_add_u32 s91, s90, {64*16*384}")
a(f"s_add_u32 s99, s90, {128*16*384}")
a("s_mul_i32 s94, s10, 12288")
a(f"s_add_u32 s98, s94, {L_T2}")
EARLY = int(os.environ.get("EARLY", "0"))
def prefetch_all(first=True):
    if first:
        load_k(0, 90)
        load_v(0, 90)
    load_k(1, 91)
    load_v(1, 91)
    for half, sr in ((0, 16), (1, 20)):
        for grp in range(2):
            a(f"s_add_u32 s94, s98, {half*6144 + grp*3072}")
            a("s_mov_b32 m0, s94")
            a(f"s_add_u32 s94, s99, {grp*3072}")
            for j in range(3):
                a(f"buffer_load_dwordx4 v{FLATV}, s[{sr}:{sr+3}], s94 offen offset:{1024*j} nt lds")
srd(a, 40, 72, 6144 * 1280)
srd(a, 48, 78, 3072)
srd(a, 44, 80, 1536 * 1280)
srd(a, 52, 82, 1280)
srd(a, 56, 84, 1280)
if EARLY:
    a("s_cmp_eq_u32 s10, 0")
    a("s_cbranch_scc1 L_noearly")
    load_k(0, 90)
    load_v(0, 90)
    a("s_waitcnt vmcnt(19)")
    a("s_branch L_early_done")
    a.label("L_noearly")
    a("s_waitcnt vmcnt(5)")
    a.label("L_early_done")
else:
    a("s_waitcnt vmcnt(5)")
for i in range(5):
    a(f"v_lshlrev_b32 v{E+2*i}, 16, v{XR+i}")
    a(f"v_and_b32 v{E+2*i+1}, 0xffff0000, v{XR+i}")
t0, t1, t2 = Q + 12, Q + 13, Q + 14
layernorm(a, E, t0, t1, t2, 15)
a("v_lshlrev_b32 v5, 3, v1")
for i in range(5):
    a(f"ds_write_b64 v5, v[{E+2*i}:{E+2*i+1}] offset:{L_XN+512*i}")
layernorm(a, E, t0, t1, t2, 15)
for i in range(5):
    a(f"ds_write_b64 v5, v[{E+2*i}:{E+2*i+1}] offset:{L_Y+512*i}")
a("s_waitcnt lgkmcnt(0)")
a("s_barrier")
stamp(1)
for r in range(8):
    a(f"v_mov_b32 v{QA+r}, 0")
a("s_mul_i32 s15, s12, 320")
a(f"v_lshlrev_b32 v5, 2, v{RG}")
a("v_add_u32 v5, s15, v5")
a(f"v_add_u32 v{TT0}, s15, v{RG6A}")
XQ = P
for i in range(4):
    a(f"ds_read_b32 v{XQ+i}, v5 offset:{L_XN + i*80}")
a(f"ds_read_b32 v{XQ+4}, v{TT0} offset:{L_Y}")
a(f"s_waitcnt vmcnt({14 if EARLY else 0}) lgkmcnt(0)")
if EARLY:
    a("s_cmp_lg_u32 s10, 0")
    a("s_cbranch_scc1 L_e2")
    a("s_waitcnt vmcnt(0)")
    a.label("L_e2")
for i in range(4):
    reg = WQR[i]
    for r in range(4):
        a(f"v_lshlrev_b32 v{TT0}, 16, v{reg+r}")
        a(f"v_and_b32 v{TT1}, 0xffff0000, v{reg+r}")
        a(f"v_fmac_f32 v{QA+2*r}, v{TT0}, v{XQ+i}")
        a(f"v_fmac_f32 v{QA+2*r+1}, v{TT1}, v{XQ+i}")
a(f"v_mul_u32_u24 v{TT0}, 768, v{RG}")
a(f"v_lshlrev_b32 v{TT1}, 5, v{C24}")
a(f"v_add_u32 v{TT0}, v{TT0}, v{TT1}")
a("v_cmp_gt_u32 vcc, 480, v0")
a("s_and_saveexec_b64 s[92:93], vcc")
a(f"ds_write_b128 v{TT0}, v[{QA}:{QA+3}] offset:{L_RED}")
a(f"ds_write_b128 v{TT0}, v[{QA+4}:{QA+7}] offset:{L_RED+16}")
a("s_or_b64 exec, exec, s[92:93]")
reg = WQR[4]
for r in range(4):
    a(f"v_lshlrev_b32 v{TT0}, 16, v{reg+r}")
    a(f"v_and_b32 v{TT1}, 0xffff0000, v{reg+r}")
    a(f"v_mul_f32 v{QA+2*r}, v{TT0}, v{XQ+4}")
    a(f"v_mul_f32 v{QA+2*r+1}, v{TT1}, v{XQ+4}")
a(f"v_mul_u32_u24 v{TT0}, 48, v{RG6A}")
a(f"v_lshlrev_b32 v{TT1}, 5, v{C6}")
a(f"v_add_u32 v{TT0}, v{TT0}, v{TT1}")
a("v_cmp_gt_u32 vcc, 480, v0")
a("s_and_saveexec_b64 s[92:93], vcc")
a(f"ds_write_b128 v{TT0}, v[{QA}:{QA+3}] offset:{L_RED+15360}")
a(f"ds_write_b128 v{TT0}, v[{QA+4}:{QA+7}] offset:{L_RED+15360+16}")
a("s_or_b64 exec, exec, s[92:93]")
a("s_waitcnt lgkmcnt(0)")
a("s_barrier")
a("s_cmp_eq_u32 s10, 0")
a("s_cbranch_scc1 L_chain")
prefetch_all(not EARLY)
a("s_branch L_chain_done")
a.label("L_chain")
FR = WQR[5]
SUM = ACC
a("s_lshl_b32 s15, s11, 2")
a(f"v_mov_b32 v{FR+26}, s15")
a("s_lshl_b32 s15, s12, 2")
a("s_add_u32 s15, s15, 128")
a(f"v_mov_b32 v{FR+27}, s15")
a(f"v_lshlrev_b32 v{TT1}, 4, v1")
a("v_cmp_gt_u32 vcc, 48, v1")
a("s_and_saveexec_b64 s[92:93], vcc")
for blk in range(4):
    for r in range(5):
        a(f"ds_read_b128 v[{FR+4*r}:{FR+4*r+3}], v{TT1} offset:{L_RED + (blk*5+r)*768}")
    a("s_waitcnt lgkmcnt(0)")
    for r in range(5):
        for e in range(4):
            if blk == 0 and r == 0:
                a(f"v_mov_b32 v{SUM+e}, v{FR+e}")
            else:
                a(f"v_add_f32 v{SUM+e}, v{SUM+e}, v{FR+4*r+e}")
a("s_mov_b64 exec, -1")
a("v_cmp_le_u32 vcc, 48, v1")
a("s_and_saveexec_b64 s[92:93], vcc")
a("v_cmp_gt_u32 vcc, 60, v1")
a("s_and_b64 exec, exec, vcc")
for blk in range(16):
    for r in range(5):
        a(f"ds_read_b128 v[{FR+4*r}:{FR+4*r+3}], v{TT1} offset:{L_RED + 15360 - 768 + (blk*5+r)*192}")
    a("s_waitcnt lgkmcnt(0)")
    for r in range(5):
        for e in range(4):
            if blk == 0 and r == 0:
                a(f"v_mov_b32 v{SUM+e}, v{FR+e}")
            else:
                a(f"v_add_f32 v{SUM+e}, v{SUM+e}, v{FR+4*r+e}")
a("s_mov_b64 exec, -1")
a("v_cmp_gt_u32 vcc, 60, v1")
a("s_and_saveexec_b64 s[92:93], vcc")
a("s_lshl_b32 s14, s2, 10")
a(f"s_add_u32 s14, s14, {WS_QP}")
a(f"buffer_store_dwordx4 v[{SUM}:{SUM+3}], v{TT1}, s[24:27], s14 offen sc1")
a("s_mov_b64 exec, -1")
a(f"v_subrev_u32 v{FR+20}, 48, v1")
a(f"v_lshlrev_b32 v{FR+20}, 3, v{FR+20}")
a(f"buffer_load_dwordx2 v[{FR+22}:{FR+23}], v{FR+20}, s[48:51], s95 offen")
a("s_mov_b32 s94, 0")
a.label("L_flag")
a(f"buffer_load_dword v{FR+24}, v{FR+26}, s[60:63], 0 offen sc1")
a(f"buffer_load_dword v{FR+25}, v{FR+27}, s[60:63], 0 offen sc1")
a("s_waitcnt vmcnt(0)")
a(f"v_and_b32 v{FR+24}, v{FR+24}, v{FR+25}")
a("s_nop 0")
a(f"v_readfirstlane_b32 s15, v{FR+24}")
a("s_nop 3")
a("s_cmp_eq_u32 s15, 1")
a("s_cbranch_scc1 L_flag_ok")
a("s_sleep 8")
a("s_add_u32 s94, s94, 1")
a("s_cmp_lt_u32 s94, 0x100000")
a("s_cbranch_scc1 L_flag")
a.label("L_flag_ok")
a(f"v_mov_b32 v{FR+24}, 1")
a("v_cmp_eq_u32 vcc, 0, v1")
a("s_and_saveexec_b64 s[92:93], vcc")
a(f"buffer_atomic_add v{FR+24}, off, s[24:27], s96 offset:64")
a("s_mov_b64 exec, -1")
a("s_mov_b32 s94, 0")
a.label("L_qpoll")
a(f"buffer_load_dword v{FR+24}, off, s[24:27], s96 offset:64 sc1")
a("s_waitcnt vmcnt(0)")
a(f"v_readfirstlane_b32 s15, v{FR+24}")
a("s_nop 3")
a(f"s_cmp_ge_u32 s15, {NCHUNK}")
a("s_cbranch_scc1 L_qpoll_done")
a("s_sleep 2")
a("s_add_u32 s94, s94, 1")
a("s_cmp_lt_u32 s94, 0x100000")
a("s_cbranch_scc1 L_qpoll")
a.label("L_qpoll_done")
G = VBUF[0]
a("v_cmp_gt_u32 vcc, 60, v1")
a("s_and_saveexec_b64 s[92:93], vcc")
a("s_lshl_b32 s14, s11, 13")
a(f"s_add_u32 s14, s14, {WS_QP}")
for c in range(NCHUNK):
    if c and c % 4 == 0:
        a("s_add_u32 s14, s14, 4096")
    a(f"buffer_load_dwordx4 v[{G+4*c}:{G+4*c+3}], v{TT1}, s[24:27], s14 offen offset:{1024*(c%4)} sc1")
a("s_waitcnt vmcnt(0)")
for e in range(4):
    a(f"v_mov_b32 v{SUM+e}, v{G+e}")
    for c in range(1, NCHUNK):
        a(f"v_add_f32 v{SUM+e}, v{SUM+e}, v{G+4*c+e}")
a(f"v_cvt_pk_bf16_f32 v{FR}, v{SUM}, v{SUM+1}")
a(f"v_cvt_pk_bf16_f32 v{FR+1}, v{SUM+2}, v{SUM+3}")
a(f"v_lshlrev_b32 v{FR+2}, 3, v1")
a("v_cmp_gt_u32 vcc, 48, v1")
a("s_and_saveexec_b64 s[100:101], vcc")
a(f"ds_write_b64 v{FR+2}, v[{FR}:{FR+1}] offset:{L_Q}")
a("s_mov_b64 exec, s[100:101]")
a(f"v_lshlrev_b32 v{SUM}, 16, v{FR}")
a(f"v_and_b32 v{SUM+1}, 0xffff0000, v{FR}")
a(f"v_lshlrev_b32 v{SUM+2}, 16, v{FR+1}")
a(f"v_and_b32 v{SUM+3}, 0xffff0000, v{FR+1}")
a(f"v_lshlrev_b32 v{FR+4}, 16, v{FR+22}")
a(f"v_and_b32 v{FR+5}, 0xffff0000, v{FR+22}")
a(f"v_lshlrev_b32 v{FR+6}, 16, v{FR+23}")
a(f"v_and_b32 v{FR+7}, 0xffff0000, v{FR+23}")
for e in range(4):
    x = SUM + e
    t = FR + 8 + e
    a(f"v_add_f32 v{x}, v{x}, v{FR+4+e}")
    rbf(a, x)
    a(f"v_mul_f32 v{t}, v{x}, v{x}")
    a(f"v_mul_f32 v{t}, {f32(0.044715)}, v{t}")
    a(f"v_add_f32 v{t}, 1.0, v{t}")
    a(f"v_mul_f32 v{t}, v{t}, v{x}")
    a(f"v_mul_f32 v{t}, {f32(-2.0*0.7978845608028654*LOG2E)}, v{t}")
    a(f"v_exp_f32 v{t}, v{t}")
    a("s_nop 1")
    a(f"v_add_f32 v{t}, 1.0, v{t}")
    a(f"v_rcp_f32 v{t}, v{t}")
    a("s_nop 1")
    a(f"v_mul_f32 v{x}, v{x}, v{t}")
    rbf(a, x)
a("v_cmp_le_u32 vcc, 48, v1")
a("s_and_b64 exec, exec, vcc")
a(f"v_lshlrev_b32 v{FR+20}, 1, v{FR+20}")
a(f"ds_write_b128 v{FR+20}, v[{SUM}:{SUM+3}] offset:{L_H}")
a("s_mov_b64 exec, -1")
a("s_waitcnt lgkmcnt(0)")
prefetch_all()
a.label("L_chain_done")
a("s_barrier")
for j in range(6):
    a(f"ds_read_b128 v[{Q+4*j}:{Q+4*j+3}], v3 offset:{L_Q+64*j}")
for k in range(2):
    a(f"v_mov_b32 v{AT[k]}, 1")
a("v_cmp_eq_u32 vcc, 0, v1")
a("s_and_saveexec_b64 s[92:93], vcc")
a(f"buffer_atomic_add v{AT[1]}, off, s[24:27], s96 sc0")
a(f"buffer_atomic_add v{AT[0]}, off, s[24:27], s96 sc0")
a("s_or_b64 exec, exec, s[92:93]")
a("s_waitcnt lgkmcnt(0)")
stamp(2)
a("v_cmp_le_u32 vcc, 24, v1")
a("v_mov_b32 v5, 0")
a(f"v_mov_b32 v{T}, 4")
a("s_nop 1")
a(f"v_cndmask_b32 v5, v5, v{T}, vcc")
for j in range(8):
    a(f"v_add_u32 v{BP+j}, {8*j}, v5")
    a(f"v_mov_b32 v{ACC+j}, 0")
a(f"v_mov_b32 v{M}, 0xff800000")
a(f"v_mov_b32 v{L}, 0")
a(f"v_mul_u32_u24 v{T}, 205, v0")
a(f"v_lshrrev_b32 v{RG}, 11, v{T}")
a(f"v_mul_u32_u24 v{T}, 10, v{RG}")
a(f"v_sub_u32 v{C24}, v0, v{T}")
a(f"v_mul_u32_u24 v7, 1280, v{RG}")
a(f"v_lshlrev_b32 v{T}, 4, v{C24}")
a(f"v_add_u32 v7, v7, v{T}")
a(f"v_mov_b32 v{T}, 0x40000000")
a("v_cmp_gt_u32 vcc, 480, v0")
a("s_nop 1")
a(f"v_cndmask_b32 v7, v{T}, v7, vcc")
KLA, VLA = WQR[0], WQR[0] + 1
a("s_mul_i32 s14, s10, 12288")
a(f"s_add_u32 s14, s14, {L_T2}")
a(f"v_add_u32 v{KLA}, s14, v2")
a(f"v_add_u32 v{VLA}, s14, v{FLATV}")

def mfma(buf):
    for j in range(6):
        c = "0" if j == 0 else f"v[{D}:{D+3}]"
        a(f"v_mfma_f32_16x16x32_bf16 v[{D}:{D+3}], v[{Q+4*j}:{Q+4*j+3}], v[{KBUF[buf]+4*j}:{KBUF[buf]+4*j+3}], {c}")

def grab(k):
    a(f"v_mov_b32 v{AT[k]}, 1")
    a("v_cmp_eq_u32 vcc, 0, v1")
    a("s_and_saveexec_b64 s[92:93], vcc")
    a(f"buffer_atomic_add v{AT[k]}, off, s[24:27], s96 sc0")
    a("s_or_b64 exec, exec, s[92:93]")

def mid(buf, vwait):
    a("s_nop 8")
    a(f"v_cvt_pk_bf16_f32 v{T}, v{D}, v{D}")
    a(f"v_lshlrev_b32 v{T}, 16, v{T}")
    a(f"v_mul_f32 v{T}, {f32(192 ** -0.5)}, v{T}")
    rbf(a, T)
    a(f"v_mul_f32 v{T}, {f32(LOG2E)}, v{T}")
    a("s_nop 1")
    a(f"v_max_f32_dpp v{T+1}, v{T}, v{T} row_ror:8 row_mask:0xf bank_mask:0xf")
    a("s_nop 1")
    a(f"v_max_f32_dpp v{T+1}, v{T+1}, v{T+1} row_ror:4 row_mask:0xf bank_mask:0xf")
    a("s_nop 1")
    a(f"v_max_f32_dpp v{T+1}, v{T+1}, v{T+1} row_ror:2 row_mask:0xf bank_mask:0xf")
    a("s_nop 1")
    a(f"v_max_f32_dpp v{T+1}, v{T+1}, v{T+1} row_ror:1 row_mask:0xf bank_mask:0xf")
    a(f"v_max_f32 v{T+1}, v{T+1}, v{M}")
    a(f"v_sub_f32 v{T+2}, v{M}, v{T+1}")
    a(f"v_sub_f32 v{T+3}, v{T}, v{T+1}")
    a(f"v_exp_f32 v{T+2}, v{T+2}")
    a(f"v_exp_f32 v{T+3}, v{T+3}")
    a(f"v_mov_b32 v{M}, v{T+1}")
    a(f"v_fma_f32 v{L}, v{L}, v{T+2}, v{T+3}")
    for j in range(8):
        a(f"ds_bpermute_b32 v{P+j}, v{BP+j}, v{T+3}")
    for j in range(8):
        a(f"v_mul_f32 v{ACC+j}, v{ACC+j}, v{T+2}")
    a("s_waitcnt lgkmcnt(0)")
    for j in range(8):
        w = vwait(j)
        if w:
            a(w)
        for r in range(4):
            wv = VBUF[buf] + 4 * j + r
            a(f"v_lshlrev_b32 v{T+4}, 16, v{wv}")
            a(f"v_and_b32 v{T+5}, 0xffff0000, v{wv}")
            a(f"v_fmac_f32 v{ACC+2*r}, v{T+4}, v{P+j}")
            a(f"v_fmac_f32 v{ACC+2*r+1}, v{T+5}, v{P+j}")

_idxn = [0]
def idx_to_off(k, sreg):
    n = _idxn[0]; _idxn[0] += 1
    a(f"v_readfirstlane_b32 s{sreg}, v{AT[k]}")
    a("s_nop 3")
    a(f"s_cmp_ge_u32 s{sreg}, 0x1000")
    a(f"s_cbranch_scc1 L_idx{n}")
    a("s_waitcnt vmcnt(0)")
    a(f"v_readfirstlane_b32 s{sreg}, v{AT[k]}")
    a("s_nop 3")
    a.label(f"L_idx{n}")
    a(f"s_sub_u32 s{sreg}, s{sreg}, {0x1000 - NSTAT}")

a("s_waitcnt vmcnt(0)")
mfma(0)
EXPG = os.environ.get("EXPG", "0")
if EXPG == "1":
    a(f"s_add_u32 s91, s90, {128*16*384}")
    load_k(0, 91)
    mid(0, lambda j: None)
    load_v(0, 91)
    a("s_waitcnt vmcnt(0)")
else:
    for j in range(6):
        a(f"ds_read_b128 v[{KBUF[0]+4*j}:{KBUF[0]+4*j+3}], v{KLA} offset:{64*j}")
    mid(0, lambda j: None)
    for j in range(8):
        a(f"ds_read_b128 v[{VBUF[0]+4*j}:{VBUF[0]+4*j+3}], v{VLA} offset:{6144+768*j}")
mfma(1)
idx_to_off(1, 91)
a(f"s_mul_i32 s91, s91, {16*384}")
load_k(1, 91)
grab(1)
mid(1, lambda j: None)
load_v(1, 91)
a("s_waitcnt lgkmcnt(0)")
mfma(0)
idx_to_off(0, 91)
a(f"s_mul_i32 s91, s91, {16*384}")
load_k(0, 91)
grab(0)
mid(0, lambda j: None)
load_v(0, 91)
def tail_loads(buf):
    kb = KBUF[buf]
    a(f"s_mul_i32 s14, s11, {192*1280}")
    a("s_mul_i32 s15, s12, 160")
    a("s_add_u32 s14, s14, s15")
    for i in range(4):
        a(f"buffer_load_dwordx4 v[{kb+4*i}:{kb+4*i+3}], v7, s[40:43], s14 offen")
        a(f"s_add_u32 s14, s14, {48*1280}")
    a(f"s_mul_i32 s14, s11, {48*1280}")
    a("s_add_u32 s14, s14, s15")
    a(f"buffer_load_dwordx4 v[{kb+16}:{kb+19}], v7, s[44:47], s14 offen")

a.label("L_loop")
for buf in (1, 0):
    a("s_waitcnt vmcnt(22)")
    mfma(buf)
    idx_to_off(buf, 91)
    a(f"s_cmp_ge_u32 s91, {NT_HEAD}")
    a(f"s_cbranch_scc1 L_drain{buf}")
    a(f"s_mul_i32 s91, s91, {16*384}")
    load_k(buf, 91)
    grab(buf)
    mid(buf, lambda j: f"s_waitcnt vmcnt({20 + 7 - j})")
    load_v(buf, 91)
a("s_branch L_loop")
for buf in (1, 0):
    other = 1 - buf
    a.label(f"L_drain{buf}")
    tail_loads(buf)
    mid(buf, lambda j: f"s_waitcnt vmcnt({19 + 7 - j})")
    a("s_waitcnt vmcnt(13)")
    mfma(other)
    mid(other, lambda j: f"s_waitcnt vmcnt({5 + 7 - j})")
    a(f"s_mov_b32 s94, {KBUF[buf]}")
    a(f"s_branch L_fin{buf}")
stamp_done = False

def finish(buf):
    KB = KBUF[buf]
    R = VBUF[0]
    sfx = str(buf)
    if buf == 1:
        stamp(3)
    a("s_nop 1")
    for sh in (8, 4, 2, 1):
        a(f"v_add_f32_dpp v{L}, v{L}, v{L} row_ror:{sh} row_mask:0xf bank_mask:0xf")
        a("s_nop 1")
    a("s_lshl_b32 s14, s10, 2")
    a(f"v_mov_b32 v{T}, s14")
    a(f"ds_write_b32 v{T}, v{M} offset:{L_WM}")
    a(f"ds_write_b32 v{T}, v{L} offset:{L_WM+64}")
    a("s_mul_i32 s14, s10, 1536")
    a(f"v_lshlrev_b32 v{T}, 5, v1")
    a(f"v_add_u32 v{T}, s14, v{T}")
    a("v_cmp_gt_u32 vcc, 48, v1")
    a("s_and_saveexec_b64 s[92:93], vcc")
    a(f"ds_write_b128 v{T}, v[{ACC}:{ACC+3}] offset:{L_ACC}")
    a(f"ds_write_b128 v{T}, v[{ACC+4}:{ACC+7}] offset:{L_ACC+16}")
    a("s_or_b64 exec, exec, s[92:93]")
    a("s_waitcnt vmcnt(0)")
    for i in range(20):
        a(f"v_mov_b32 v{WQR[1]+i}, v{KB+i}")
    if buf == 0:
        a("s_branch L_common")

a.label("L_fin0")
finish(0)
a.label("L_fin1")
finish(1)
a.label("L_common")
KB = WQR[1]
R = VBUF[0]
a("s_waitcnt lgkmcnt(0)")
a("s_barrier")
a("v_cmp_gt_u32 vcc, 192, v0")
a("s_and_saveexec_b64 s[92:93], vcc")
a("s_cbranch_execz L_rec_done")
a(f"v_mov_b32 v{T}, 0")
a(f"v_lshlrev_b32 v{T+1}, 2, v0")
for w in range(NW):
    a(f"ds_read_b32 v{R+w}, v{T} offset:{L_WM+4*w}")
    a(f"ds_read_b32 v{R+8+w}, v{T} offset:{L_WM+64+4*w}")
    a(f"ds_read_b32 v{R+16+2*w}, v{T+1} offset:{L_ACC+1536*w}")
    a(f"ds_read_b32 v{R+17+2*w}, v{T+1} offset:{L_ACC+1536*w+768}")
a("s_waitcnt lgkmcnt(0)")
a(f"v_mov_b32 v{T+2}, v{R}")
for w in range(1, NW):
    a(f"v_max_f32 v{T+2}, v{T+2}, v{R+w}")
a(f"v_mov_b32 v{T+3}, 0")
a(f"v_mov_b32 v{T+4}, 0")
for w in range(NW):
    a(f"v_sub_f32 v{T+5}, v{R+w}, v{T+2}")
    a(f"v_exp_f32 v{T+5}, v{T+5}")
    a(f"v_add_f32 v{P}, v{R+16+2*w}, v{R+17+2*w}")
    a(f"v_fmac_f32 v{T+3}, v{T+5}, v{R+8+w}")
    a(f"v_fmac_f32 v{T+4}, v{T+5}, v{P}")
a("s_lshl_b32 s14, s2, 10")
a(f"s_add_u32 s14, s14, {WS_PART}")
a(f"buffer_store_dword v{T+4}, v{T+1}, s[24:27], s14 offen sc1")
a("v_cmp_eq_u32 vcc, 0, v0")
a("s_and_saveexec_b64 s[100:101], vcc")
a(f"buffer_store_dword v{T+2}, v{T+1}, s[24:27], s14 offen offset:768 sc1")
a(f"buffer_store_dword v{T+3}, v{T+1}, s[24:27], s14 offen offset:772 sc1")
a.label("L_rec_done")
a("s_mov_b64 exec, -1")
a("s_waitcnt vmcnt(0)")
a("s_barrier")
stamp(4)
a("s_cmp_lg_u32 s10, 0")
a("s_cbranch_scc1 L_poll_done")
a(f"v_mov_b32 v{T+1}, 1")
a("v_cmp_eq_u32 vcc, 0, v0")
a("s_and_saveexec_b64 s[92:93], vcc")
a(f"buffer_atomic_add v{T+1}, off, s[24:27], s96 offset:128")
a("s_or_b64 exec, exec, s[92:93]")
a("s_mov_b32 s15, 0")
a.label("L_poll")
a(f"buffer_load_dword v{T+1}, off, s[24:27], s96 offset:128 sc1")
a("s_waitcnt vmcnt(0)")
a(f"v_readfirstlane_b32 s14, v{T+1}")
a("s_nop 3")
a(f"s_cmp_ge_u32 s14, {NCHUNK}")
a("s_cbranch_scc1 L_poll_done")
a("s_sleep 2")
a("s_add_u32 s15, s15, 1")
a("s_cmp_lt_u32 s15, 0x100000")
a("s_cbranch_scc1 L_poll")
a.label("L_poll_done")
a("s_barrier")
stamp(5)
a("v_cmp_gt_u32 vcc, 192, v0")
a("s_and_saveexec_b64 s[92:93], vcc")
a("s_cbranch_execz L_o_done")
a("s_lshl_b32 s14, s11, 13")
a(f"s_add_u32 s14, s14, {WS_PART}")
a(f"v_lshlrev_b32 v{T+1}, 2, v0")
a(f"v_mov_b32 v{T}, 0")
for c in range(NCHUNK):
    if c and c % 4 == 0:
        a("s_add_u32 s14, s14, 4096")
    a(f"buffer_load_dword v{R+c}, v{T+1}, s[24:27], s14 offen offset:{1024*(c%4)} sc1")
    a(f"buffer_load_dwordx2 v[{R+8+2*c}:{R+9+2*c}], v{T}, s[24:27], s14 offen offset:{1024*(c%4)+768} sc1")
a("s_waitcnt vmcnt(0)")
a(f"v_mov_b32 v{T+2}, v{R+8}")
for c in range(1, NCHUNK):
    a(f"v_max_f32 v{T+2}, v{T+2}, v{R+8+2*c}")
a(f"v_mov_b32 v{T+3}, 0")
a(f"v_mov_b32 v{T+4}, 0")
for c in range(NCHUNK):
    a(f"v_sub_f32 v{T+5}, v{R+8+2*c}, v{T+2}")
    a(f"v_exp_f32 v{T+5}, v{T+5}")
    a("s_nop 0")
    a(f"v_fmac_f32 v{T+3}, v{T+5}, v{R+9+2*c}")
    a(f"v_fmac_f32 v{T+4}, v{T+5}, v{R+c}")
a(f"v_rcp_f32 v{T+5}, v{T+3}")
a("s_nop 1")
a(f"v_fma_f32 v{T+2}, -v{T+3}, v{T+5}, 1.0")
a(f"v_fmac_f32 v{T+5}, v{T+2}, v{T+5}")
a(f"v_mul_f32 v{T+4}, v{T+4}, v{T+5}")
rbf(a, T + 4)
a(f"ds_write_b32 v{T+1}, v{T+4} offset:{L_O}")
a.label("L_o_done")
a("s_mov_b64 exec, -1")
a("s_waitcnt lgkmcnt(0)")
a("s_barrier")
a(f"v_lshlrev_b32 v5, 2, v{RG}")
for i in range(4):
    a(f"ds_read_b32 v{R+i}, v5 offset:{L_O + 48*4*i}")
a(f"ds_read_b32 v{R+4}, v5 offset:{L_H}")
for r in range(8):
    a(f"v_mov_b32 v{ACC+r}, 0")
a("s_waitcnt lgkmcnt(0)")
for i in range(4):
    for r in range(4):
        a(f"v_lshlrev_b32 v{T+4}, 16, v{KB+4*i+r}")
        a(f"v_and_b32 v{T+5}, 0xffff0000, v{KB+4*i+r}")
        a(f"v_fmac_f32 v{ACC+2*r}, v{T+4}, v{R+i}")
        a(f"v_fmac_f32 v{ACC+2*r+1}, v{T+5}, v{R+i}")
for r in range(4):
    a(f"v_lshlrev_b32 v{T+4}, 16, v{KB+16+r}")
    a(f"v_and_b32 v{T+5}, 0xffff0000, v{KB+16+r}")
    a(f"v_mul_f32 v{P+2*r}, v{T+4}, v{R+4}")
    a(f"v_mul_f32 v{P+2*r+1}, v{T+5}, v{R+4}")
a(f"v_mul_u32_u24 v5, 640, v{RG}")
a(f"v_lshlrev_b32 v{T}, 5, v{C24}")
a(f"v_add_u32 v5, v5, v{T}")
a("v_cmp_gt_u32 vcc, 480, v0")
a("s_and_saveexec_b64 s[92:93], vcc")
a(f"ds_write_b128 v5, v[{ACC}:{ACC+3}] offset:{L_RED}")
a(f"ds_write_b128 v5, v[{ACC+4}:{ACC+7}] offset:{L_RED+16}")
a(f"ds_write_b128 v5, v[{P}:{P+3}] offset:{L_RED+320}")
a(f"ds_write_b128 v5, v[{P+4}:{P+7}] offset:{L_RED+336}")
a("s_or_b64 exec, exec, s[92:93]")
a("s_waitcnt lgkmcnt(0)")
a("s_barrier")
a("v_cmp_gt_u32 vcc, 160, v0")
a("s_and_saveexec_b64 s[92:93], vcc")
a("s_cbranch_execz L_outp_done")
a("v_lshlrev_b32 v5, 2, v0")
for blk in range(2):
    for r in range(24):
        a(f"ds_read_b32 v{R+r}, v5 offset:{L_RED + (blk*24+r)*640}")
    a("s_waitcnt lgkmcnt(0)")
    for r in range(24):
        if blk == 0 and r == 0:
            a(f"v_mov_b32 v{T}, v{R}")
        else:
            a(f"v_add_f32 v{T}, v{T}, v{R+r}")
a("s_mul_i32 s14, s12, 20480")
a("s_mul_i32 s15, s11, 640")
a("s_add_u32 s14, s14, s15")
a(f"s_add_u32 s14, s14, {WS_OUTP}")
a(f"buffer_store_dword v{T}, v5, s[24:27], s14 offen sc1")
a.label("L_outp_done")
a("s_mov_b64 exec, -1")
a("s_waitcnt vmcnt(0)")
a("s_barrier")
stamp(6)
a(f"v_mov_b32 v{T}, 0")
a("v_cmp_eq_u32 vcc, 0, v0")
a("s_and_saveexec_b64 s[92:93], vcc")
a("s_lshl_b32 s14, s12, 8")
a(f"s_add_u32 s14, s14, {WS_CG}")
a(f"v_mov_b32 v{T+2}, 1")
a(f"buffer_atomic_add v{T+2}, off, s[24:27], s14 sc0")
a("s_waitcnt vmcnt(0)")
a(f"ds_write_b32 v{T}, v{T+2} offset:{L_FLAG}")
a("s_or_b64 exec, exec, s[92:93]")
a("s_waitcnt lgkmcnt(0)")
a("s_barrier")
a(f"ds_read_b32 v{T+2}, v{T} offset:{L_FLAG}")
a("s_waitcnt lgkmcnt(0)")
a(f"v_readfirstlane_b32 s14, v{T+2}")
a("s_nop 3")
a("s_cmp_lg_u32 s14, 31")
a("s_cbranch_scc1 L_done")
a("v_cmp_gt_u32 vcc, 160, v0")
a("s_and_saveexec_b64 s[92:93], vcc")
a("v_lshlrev_b32 v5, 2, v0")
a("s_mul_i32 s14, s12, 20480")
a(f"s_add_u32 s14, s14, {WS_OUTP}")
F = KBUF[0]
for hh in range(32):
    if hh and hh % 4 == 0:
        a("s_add_u32 s14, s14, 2560")
    a(f"buffer_load_dword v{F+hh}, v5, s[24:27], s14 offen offset:{640*(hh%4)} sc1")
a(f"v_subrev_u32 v{T+1}, 80, v0")
a("v_cmp_gt_u32 vcc, 80, v0")
a("s_nop 1")
a(f"v_cndmask_b32 v{T+1}, v{T+1}, v0, vcc")
a(f"v_lshlrev_b32 v{T+1}, 1, v{T+1}")
a("s_mul_i32 s15, s12, 160")
a(f"buffer_load_ushort v{T+2}, v{T+1}, s[36:39], s15 offen")
a(f"buffer_load_ushort v{T+3}, v{T+1}, s[52:55], s15 offen")
a("s_waitcnt vmcnt(0)")
a(f"v_mov_b32 v{T}, v{F}")
for hh in range(1, 32):
    a(f"v_add_f32 v{T}, v{T}, v{F+hh}")
rbf(a, T)
a(f"v_lshlrev_b32 v{T+3}, 16, v{T+3}")
a(f"v_add_f32 v{T+4}, v{T}, v{T+3}")
rbf(a, T + 4)
a(f"v_mul_f32 v{T+5}, {f32(-LOG2E)}, v{T+4}")
a(f"v_exp_f32 v{T+5}, v{T+5}")
a("s_nop 1")
a(f"v_add_f32 v{T+5}, 1.0, v{T+5}")
a(f"v_rcp_f32 v{T+5}, v{T+5}")
a("s_nop 1")
a(f"v_mul_f32 v{T+4}, v{T+4}, v{T+5}")
rbf(a, T + 4)
a(f"ds_write_b32 v5, v{T+4} offset:{L_RED}")
a("s_or_b64 exec, exec, s[92:93]")
a("s_waitcnt lgkmcnt(0)")
a("s_barrier")
a("v_cmp_gt_u32 vcc, 80, v0")
a("s_and_saveexec_b64 s[92:93], vcc")
a("s_cbranch_execz L_done")
a(f"ds_read_b32 v{T+4}, v5 offset:{L_RED+320}")
a("s_waitcnt lgkmcnt(0)")
a(f"v_mul_f32 v{T}, v{T}, v{T+4}")
rbf(a, T)
a(f"v_lshlrev_b32 v{T+2}, 16, v{T+2}")
a(f"v_add_f32 v{T}, v{T}, v{T+2}")
a(f"v_cvt_pk_bf16_f32 v{T}, v{T}, v{T}")
a(f"buffer_store_short v{T}, v{T+1}, s[56:59], s15 offen")
a("s_mov_b64 exec, -1")
stamp(7)
a.label("L_done")
a("s_endpgm")

out += a.text()
nv = 254 if DIAG else NV
out += f""".section .rodata,"a"
.p2align 6
.amdhsa_kernel {KN}
  .amdhsa_next_free_vgpr {nv}
  .amdhsa_next_free_sgpr 102
  .amdhsa_accum_offset {(nv+3)//4*4}
  .amdhsa_group_segment_fixed_size 0
  .amdhsa_kernarg_size 104
  .amdhsa_user_sgpr_count 2
  .amdhsa_user_sgpr_kernarg_segment_ptr 1
  .amdhsa_system_sgpr_workgroup_id_x 1
.end_amdhsa_kernel
"""
open(OUT, "w").write(out)
print("wrote", OUT, len(out), "vgpr", nv, "lds", LDS_BYTES)
```

```python
import struct, sys, os, re, math

NAME = "recurrent_scan__gqa_block_cached__mixer_channel_mlp__decode"
OUT = os.environ.get("OUT", "cdna_kernels/%s.s" % NAME)
DIAG = os.environ.get("DIAG", "0") == "1"

NW = 8
NCHUNK = 8
SK = 8192
NT_HEAD = SK // 16
NSTAT = 3 * NW * NCHUNK

WS_CTR = 0
WS_CG = 32 * 256
WS_PART = 65536
WS_OUTP = WS_PART + 32 * NCHUNK * 1024
WS_QP = WS_OUTP + 8 * 32 * 640
WS_SIZE = 402653184

KA_X, KA_K, KA_V, KA_WQ, KA_WO, KA_BX, KA_W1, KA_B1, KA_W2, KA_B2, KA_OUT, KA_DBG, KA_WS = [8 * i for i in range(13)]

L_XN = 0
L_Y = 2560
L_RED = 5120
L_ACC = 5120
L_Q = 35840
L_H = 36224
L_WM = 36416
L_O = 36544
L_FLAG = 37312
L_T2 = 37376
LDS_BYTES = L_T2 + NW * 12288

def f32(x):
    return "0x%08x" % struct.unpack("<I", struct.pack("<f", x))[0]
LOG2E = 1.4426950408889634
for t in range(480):
    assert (t * 171) >> 12 == t // 24 and (t * 171) >> 10 == t // 6 and (t * 205) >> 11 == t // 10

class A:
    def __init__(self):
        self.l = []
    def __call__(self, s):
        for line in s.split("\n"):
            line = line.strip()
            m = re.search(r"offset:(\d+)", line)
            if m and line.startswith("buffer_"):
                assert int(m.group(1)) <= 4095, line
            if m and line.startswith("ds_"):
                assert int(m.group(1)) <= 65535, line
            self.l.append("    " + line)
    def label(self, s):
        self.l.append(s + ":")
    def text(self):
        return "\n".join(self.l) + "\n"

def srd(a, d, b, nbytes, add=None):
    if add is None:
        a(f"s_mov_b32 s{d}, s{b}")
        a(f"s_and_b32 s{d+1}, s{b+1}, 0xffff")
    else:
        a(f"s_add_u32 s{d}, s{b}, {add}")
        a(f"s_addc_u32 s{d+1}, s{b+1}, 0")
        a(f"s_and_b32 s{d+1}, s{d+1}, 0xffff")
    a(f"s_mov_b32 s{d+2}, {nbytes}")
    a(f"s_mov_b32 s{d+3}, 0x00020000")

def rbf(a, v):
    a(f"v_cvt_pk_bf16_f32 v{v}, v{v}, v{v}")
    a(f"v_lshlrev_b32 v{v}, 16, v{v}")

def wave_sum(a, v, s):
    a("s_nop 1")
    for sh in (1, 2, 4, 8):
        a(f"v_add_f32_dpp v{v}, v{v}, v{v} row_shr:{sh} row_mask:0xf bank_mask:0xf bound_ctrl:0")
        a("s_nop 1")
    a(f"v_add_f32_dpp v{v}, v{v}, v{v} row_bcast:15 row_mask:0xa bank_mask:0xf")
    a("s_nop 1")
    a(f"v_add_f32_dpp v{v}, v{v}, v{v} row_bcast:31 row_mask:0xc bank_mask:0xf")
    a("s_nop 1")
    a(f"v_readlane_b32 s{s}, v{v}, 63")
    a("s_nop 3")

def layernorm(a, e, t0, t1, t2, s):
    a(f"v_add_f32 v{t0}, v{e}, v{e+1}")
    for i in range(2, 10):
        a(f"v_add_f32 v{t0}, v{t0}, v{e+i}")
    wave_sum(a, t0, s)
    a(f"v_mov_b32 v{t1}, s{s}")
    a(f"v_mul_f32 v{t1}, {f32(1.0/640)}, v{t1}")
    a(f"v_mov_b32 v{t0}, 0")
    for i in range(10):
        a(f"v_sub_f32 v{t2}, v{e+i}, v{t1}")
        a(f"v_fmac_f32 v{t0}, v{t2}, v{t2}")
    wave_sum(a, t0, s)
    a(f"v_mov_b32 v{t0}, s{s}")
    a(f"v_mul_f32 v{t0}, {f32(1.0/640)}, v{t0}")
    rbf(a, t0)
    rbf(a, t1)
    a(f"v_add_f32 v{t0}, {f32(1e-5)}, v{t0}")
    rbf(a, t0)
    a(f"v_sqrt_f32 v{t0}, v{t0}")
    a("s_nop 1")
    rbf(a, t0)
    a(f"v_rcp_f32 v{t2}, v{t0}")
    a("s_nop 1")
    a(f"v_fma_f32 v{t0}, -v{t0}, v{t2}, 1.0")
    a(f"v_fmac_f32 v{t2}, v{t0}, v{t2}")
    for i in range(10):
        a(f"v_sub_f32 v{e+i}, v{e+i}, v{t1}")
        rbf(a, e + i)
        a(f"v_mul_f32 v{e+i}, v{e+i}, v{t2}")
        rbf(a, e + i)

def stamp(i):
    if not DIAG:
        return
    a(f"s_cmp_lg_u32 s10, 0")
    a(f"s_cbranch_scc1 L_st{i}")
    a("s_memrealtime s[4:5]")
    a("s_waitcnt lgkmcnt(0)")
    a("s_lshl_b32 s6, s2, 6")
    a(f"s_add_u32 s6, s6, {(1<<20) + 8*i}")
    a("v_mov_b32 v252, s4")
    a("v_mov_b32 v253, s5")
    a("s_mov_b64 s[4:5], exec")
    a("s_mov_b64 exec, 1")
    a("buffer_store_dwordx2 v[252:253], off, s[24:27], s6")
    a("s_mov_b64 exec, s[4:5]")
    a.label(f"L_st{i}")

a = A()
hdr = open("cdna_kernels/%s.s.ref" % NAME).read().split("\n")
comment = [l for l in hdr if l.startswith(";") and "@launch" not in l]
out = "\n".join(comment) + "\n"
out += f"; @launch grid=({32*NCHUNK},1,1) block=({64*NW},1,1) lds={LDS_BYTES}\n"
out += '.amdgcn_target "amdgcn-amd-amdhsa--gfx950"\n.text\n'
KN = NAME + "_kernel"
a(f".globl {KN}")
a(".p2align 8")
a(f".type {KN},@function")
a.label(KN)

Q = 8
KBUF = [32, 88]
VBUF = [56, 112]
ACC = 144
M, L = 152, 153
T = 154
P = 160
D = 168
BP = 172
RG, C24, HV, FLATV = 180, 181, 184, 185
AT = [182, 183]
W1V, RG6A, C6 = 186, 187, D + 3
WS0 = 188
NSLOT = 16
WQR = [WS0 + 4 * i for i in range(NSLOT)]
NV = WS0 + 4 * NSLOT
QA = ACC
XV = P
TT0, TT1 = T, T + 1

a(f"s_cmp_ge_u32 s2, {32*NCHUNK}")
a("s_cbranch_scc1 L_done")
a(f"s_load_dwordx4 s[64:67], s[0:1], {KA_X}")
a(f"s_load_dwordx4 s[68:71], s[0:1], {KA_V}")
a(f"s_load_dwordx2 s[72:73], s[0:1], {KA_WO}")
a(f"s_load_dwordx4 s[76:79], s[0:1], {KA_W1}")
a(f"s_load_dwordx4 s[80:83], s[0:1], {KA_W2}")
a(f"s_load_dwordx4 s[84:87], s[0:1], {KA_OUT}")
a(f"s_load_dwordx2 s[88:89], s[0:1], {KA_WS}")
a("v_lshrrev_b32 v1, 6, v0")
a("s_nop 0")
a("v_readfirstlane_b32 s10, v1")
a("v_and_b32 v1, 63, v0")
a("s_lshr_b32 s11, s2, 3")
a("s_and_b32 s12, s2, 7")
a("s_mul_i32 s13, s11, 3145728")
a("v_and_b32 v2, 15, v1")
a("v_mul_u32_u24 v2, 384, v2")
a("v_lshrrev_b32 v3, 4, v1")
a("v_lshlrev_b32 v3, 4, v3")
a("v_add_u32 v2, v2, v3")
a(f"v_lshlrev_b32 v{FLATV}, 4, v1")
a(f"v_add_u32 v{HV}, 4096, v{FLATV}")
a("v_mov_b32 v5, 0x40000000")
a("v_cmp_gt_u32 vcc, 48, v1")
a("s_nop 1")
a(f"v_cndmask_b32 v4, v5, v{FLATV}, vcc")
a("v_add_u32 v6, 3072, v4")
a(f"v_mul_u32_u24 v{TT0}, 171, v0")
a(f"v_lshrrev_b32 v{RG}, 12, v{TT0}")
a(f"v_mul_u32_u24 v{TT1}, 24, v{RG}")
a(f"v_sub_u32 v{C24}, v0, v{TT1}")
a(f"v_lshrrev_b32 v{TT0}, 10, v{TT0}")
a(f"v_mul_u32_u24 v{TT1}, 6, v{TT0}")
a(f"v_sub_u32 v{C6}, v0, v{TT1}")
a(f"v_mul_u32_u24 v{W1V}, 3072, v{TT0}")
a(f"v_lshlrev_b32 v{TT1}, 4, v{C6}")
a(f"v_add_u32 v{W1V}, v{W1V}, v{TT1}")
a(f"v_lshlrev_b32 v{RG6A}, 2, v{TT0}")
a("s_mov_b32 s14, 12288")
a(f"v_mul_lo_u32 v7, v{RG}, s14")
a(f"v_lshlrev_b32 v{TT1}, 4, v{C24}")
a(f"v_add_u32 v7, v7, v{TT1}")
a("v_mov_b32 v5, 0x40000000")
a("v_cmp_gt_u32 vcc, 480, v0")
a("s_nop 1")
a("v_cndmask_b32 v7, v5, v7, vcc")
a(f"v_cndmask_b32 v{W1V}, v5, v{W1V}, vcc")
a("s_lshl_b32 s90, s12, 3")
a("s_add_u32 s90, s90, s10")
a(f"s_mul_i32 s90, s90, {16*384}")
a("s_lshl_b32 s96, s11, 8")
a(f"s_add_u32 s96, s96, {WS_CTR}")
a("s_waitcnt lgkmcnt(0)")
srd(a, 36, 64, 1280)
srd(a, 16, 66, 3145728, add="s13")
srd(a, 20, 68, 3145728, add="s13")
srd(a, 28, 70, 640 * 12288)
srd(a, 32, 76, 640 * 3072)
srd(a, 24, 88, WS_SIZE)
srd(a, 60, 86, 256)
stamp(0)
XR = Q + 18
E = Q
a("v_lshlrev_b32 v5, 2, v1")
for i in range(5):
    a(f"buffer_load_dword v{XR+i}, v5, s[36:39], 0 offen offset:{256*i}")
a("s_cmp_lg_u32 s10, 0")
a("s_cbranch_scc1 L_init_done")
a(f"v_mov_b32 v{TT0}, 0")
a(f"v_lshlrev_b32 v{TT1}, 6, v1")
a("s_cmp_lg_u32 s12, 0")
a("s_cbranch_scc1 L_init_cg")
a("v_cmp_eq_u32 vcc, 0, v1")
a(f"v_mov_b32 v{TT0+3}, 0x1000")
a("s_nop 0")
a(f"v_cndmask_b32 v{TT0+3}, v{TT0}, v{TT0+3}, vcc")
a("v_cmp_gt_u32 vcc, 3, v1")
a("s_and_saveexec_b64 s[92:93], vcc")
a(f"buffer_store_dword v{TT0+3}, v{TT1}, s[24:27], s96 offen sc1")
a("s_mov_b64 exec, -1")
a("s_waitcnt vmcnt(0)")
a("s_lshl_b32 s14, s11, 2")
a(f"v_mov_b32 v{TT1}, s14")
a(f"v_mov_b32 v{TT0+2}, 1")
a("v_cmp_eq_u32 vcc, 0, v1")
a("s_and_saveexec_b64 s[92:93], vcc")
a(f"buffer_atomic_add v{TT0+2}, v{TT1}, s[60:63], 0 offen")
a("s_mov_b64 exec, -1")
a.label("L_init_cg")
a("s_cmp_lg_u32 s11, 0")
a("s_cbranch_scc1 L_init_done")
a("s_lshl_b32 s14, s12, 8")
a(f"s_add_u32 s14, s14, {WS_CG}")
a("v_cmp_eq_u32 vcc, 0, v1")
a("s_and_saveexec_b64 s[92:93], vcc")
a(f"buffer_store_dword v{TT0}, off, s[24:27], s14 sc1")
a("s_waitcnt vmcnt(0)")
a("s_lshl_b32 s14, s12, 2")
a("s_add_u32 s14, s14, 128")
a(f"v_mov_b32 v{TT1}, s14")
a(f"v_mov_b32 v{TT0+2}, 1")
a(f"buffer_atomic_add v{TT0+2}, v{TT1}, s[60:63], 0 offen")
a("s_mov_b64 exec, -1")
a.label("L_init_done")
a("s_mul_i32 s14, s11, 384")
a(f"s_mul_i32 s15, s12, {80*12288}")
a("s_add_u32 s14, s14, s15")
a("s_mul_i32 s95, s11, 96")
a(f"s_mul_i32 s15, s12, {80*3072}")
a("s_add_u32 s15, s95, s15")
for i in range(4):
    if i:
        a(f"s_add_u32 s14, s14, {20*12288}")
    a(f"buffer_load_dwordx4 v[{WQR[i]}:{WQR[i]+3}], v7, s[28:31], s14 offen")
a(f"buffer_load_dwordx4 v[{WQR[4]}:{WQR[4]+3}], v{W1V}, s[32:35], s15 offen")
def k_ins(buf, soff):
    if os.environ.get("FLATK") == "1":
        return [f"buffer_load_dwordx4 v[{KBUF[buf]+4*j}:{KBUF[buf]+4*j+3}], v{FLATV if j < 4 else HV}, s[16:19], s{soff} offen offset:{1024*(j%4)} nt" for j in range(6)]
    return [f"buffer_load_dwordx4 v[{KBUF[buf]+4*j}:{KBUF[buf]+4*j+3}], v2, s[16:19], s{soff} offen offset:{64*j} nt" for j in range(6)]
def v_ins(buf, soff):
    return [f"buffer_load_dwordx4 v[{VBUF[buf]+4*j}:{VBUF[buf]+4*j+3}], v{4 if j < 4 else 6}, s[20:23], s{soff} offen offset:{768*(j%4)} nt" for j in range(8)]
def load_k(buf, soff):
    for l in k_ins(buf, soff):
        a(l)
def load_v(buf, soff):
    for l in v_ins(buf, soff):
        a(l)
a(f"s_add_u32 s91, s90, {64*16*384}")
a(f"s_add_u32 s99, s90, {128*16*384}")
a("s_mul_i32 s94, s10, 12288")
a(f"s_add_u32 s98, s94, {L_T2}")
EARLY = int(os.environ.get("EARLY", "0"))
def prefetch_all(first=True):
    if first:
        load_k(0, 90)
        load_v(0, 90)
    load_k(1, 91)
    load_v(1, 91)
    for half, sr in ((0, 16), (1, 20)):
        for grp in range(2):
            a(f"s_add_u32 s94, s98, {half*6144 + grp*3072}")
            a("s_mov_b32 m0, s94")
            a(f"s_add_u32 s94, s99, {grp*3072}")
            for j in range(3):
                a(f"buffer_load_dwordx4 v{FLATV}, s[{sr}:{sr+3}], s94 offen offset:{1024*j} nt lds")
srd(a, 40, 72, 6144 * 1280)
srd(a, 48, 78, 3072)
srd(a, 44, 80, 1536 * 1280)
srd(a, 52, 82, 1280)
srd(a, 56, 84, 1280)
if EARLY:
    a("s_cmp_eq_u32 s10, 0")
    a("s_cbranch_scc1 L_noearly")
    load_k(0, 90)
    load_v(0, 90)
    a("s_waitcnt vmcnt(19)")
    a("s_branch L_early_done")
    a.label("L_noearly")
    a("s_waitcnt vmcnt(5)")
    a.label("L_early_done")
else:
    a("s_waitcnt vmcnt(5)")
for i in range(5):
    a(f"v_lshlrev_b32 v{E+2*i}, 16, v{XR+i}")
    a(f"v_and_b32 v{E+2*i+1}, 0xffff0000, v{XR+i}")
t0, t1, t2 = Q + 12, Q + 13, Q + 14
layernorm(a, E, t0, t1, t2, 15)
a("v_lshlrev_b32 v5, 3, v1")
for i in range(5):
    a(f"ds_write_b64 v5, v[{E+2*i}:{E+2*i+1}] offset:{L_XN+512*i}")
layernorm(a, E, t0, t1, t2, 15)
for i in range(5):
    a(f"ds_write_b64 v5, v[{E+2*i}:{E+2*i+1}] offset:{L_Y+512*i}")
a("s_waitcnt lgkmcnt(0)")
a("s_barrier")
stamp(1)
for r in range(8):
    a(f"v_mov_b32 v{QA+r}, 0")
a("s_mul_i32 s15, s12, 320")
a(f"v_lshlrev_b32 v5, 2, v{RG}")
a("v_add_u32 v5, s15, v5")
a(f"v_add_u32 v{TT0}, s15, v{RG6A}")
XQ = P
for i in range(4):
    a(f"ds_read_b32 v{XQ+i}, v5 offset:{L_XN + i*80}")
a(f"ds_read_b32 v{XQ+4}, v{TT0} offset:{L_Y}")
a(f"s_waitcnt vmcnt({14 if EARLY else 0}) lgkmcnt(0)")
if EARLY:
    a("s_cmp_lg_u32 s10, 0")
    a("s_cbranch_scc1 L_e2")
    a("s_waitcnt vmcnt(0)")
    a.label("L_e2")
for i in range(4):
    reg = WQR[i]
    for r in range(4):
        a(f"v_lshlrev_b32 v{TT0}, 16, v{reg+r}")
        a(f"v_and_b32 v{TT1}, 0xffff0000, v{reg+r}")
        a(f"v_fmac_f32 v{QA+2*r}, v{TT0}, v{XQ+i}")
        a(f"v_fmac_f32 v{QA+2*r+1}, v{TT1}, v{XQ+i}")
a(f"v_mul_u32_u24 v{TT0}, 768, v{RG}")
a(f"v_lshlrev_b32 v{TT1}, 5, v{C24}")
a(f"v_add_u32 v{TT0}, v{TT0}, v{TT1}")
a("v_cmp_gt_u32 vcc, 480, v0")
a("s_and_saveexec_b64 s[92:93], vcc")
a(f"ds_write_b128 v{TT0}, v[{QA}:{QA+3}] offset:{L_RED}")
a(f"ds_write_b128 v{TT0}, v[{QA+4}:{QA+7}] offset:{L_RED+16}")
a("s_or_b64 exec, exec, s[92:93]")
reg = WQR[4]
for r in range(4):
    a(f"v_lshlrev_b32 v{TT0}, 16, v{reg+r}")
    a(f"v_and_b32 v{TT1}, 0xffff0000, v{reg+r}")
    a(f"v_mul_f32 v{QA+2*r}, v{TT0}, v{XQ+4}")
    a(f"v_mul_f32 v{QA+2*r+1}, v{TT1}, v{XQ+4}")
a(f"v_mul_u32_u24 v{TT0}, 48, v{RG6A}")
a(f"v_lshlrev_b32 v{TT1}, 5, v{C6}")
a(f"v_add_u32 v{TT0}, v{TT0}, v{TT1}")
a("v_cmp_gt_u32 vcc, 480, v0")
a("s_and_saveexec_b64 s[92:93], vcc")
a(f"ds_write_b128 v{TT0}, v[{QA}:{QA+3}] offset:{L_RED+15360}")
a(f"ds_write_b128 v{TT0}, v[{QA+4}:{QA+7}] offset:{L_RED+15360+16}")
a("s_or_b64 exec, exec, s[92:93]")
a("s_waitcnt lgkmcnt(0)")
a("s_barrier")
a("s_cmp_eq_u32 s10, 0")
a("s_cbranch_scc1 L_chain")
HOLD = int(os.environ.get("HOLD", "0"))
if HOLD:
    a("s_barrier")
prefetch_all(not EARLY)
a("s_branch L_chain_done")
a.label("L_chain")
FR = WQR[5]
SUM = ACC
a("s_lshl_b32 s15, s11, 2")
a(f"v_mov_b32 v{FR+26}, s15")
a("s_lshl_b32 s15, s12, 2")
a("s_add_u32 s15, s15, 128")
a(f"v_mov_b32 v{FR+27}, s15")
a(f"v_lshlrev_b32 v{TT1}, 4, v1")
a("v_cmp_gt_u32 vcc, 48, v1")
a("s_and_saveexec_b64 s[92:93], vcc")
for blk in range(4):
    for r in range(5):
        a(f"ds_read_b128 v[{FR+4*r}:{FR+4*r+3}], v{TT1} offset:{L_RED + (blk*5+r)*768}")
    a("s_waitcnt lgkmcnt(0)")
    for r in range(5):
        for e in range(4):
            if blk == 0 and r == 0:
                a(f"v_mov_b32 v{SUM+e}, v{FR+e}")
            else:
                a(f"v_add_f32 v{SUM+e}, v{SUM+e}, v{FR+4*r+e}")
a("s_mov_b64 exec, -1")
a("v_cmp_le_u32 vcc, 48, v1")
a("s_and_saveexec_b64 s[92:93], vcc")
a("v_cmp_gt_u32 vcc, 60, v1")
a("s_and_b64 exec, exec, vcc")
for blk in range(16):
    for r in range(5):
        a(f"ds_read_b128 v[{FR+4*r}:{FR+4*r+3}], v{TT1} offset:{L_RED + 15360 - 768 + (blk*5+r)*192}")
    a("s_waitcnt lgkmcnt(0)")
    for r in range(5):
        for e in range(4):
            if blk == 0 and r == 0:
                a(f"v_mov_b32 v{SUM+e}, v{FR+e}")
            else:
                a(f"v_add_f32 v{SUM+e}, v{SUM+e}, v{FR+4*r+e}")
a("s_mov_b64 exec, -1")
a("v_cmp_gt_u32 vcc, 60, v1")
a("s_and_saveexec_b64 s[92:93], vcc")
a("s_lshl_b32 s14, s2, 10")
a(f"s_add_u32 s14, s14, {WS_QP}")
a(f"buffer_store_dwordx4 v[{SUM}:{SUM+3}], v{TT1}, s[24:27], s14 offen sc1")
a("s_mov_b64 exec, -1")
a(f"v_subrev_u32 v{FR+20}, 48, v1")
a(f"v_lshlrev_b32 v{FR+20}, 3, v{FR+20}")
a(f"buffer_load_dwordx2 v[{FR+22}:{FR+23}], v{FR+20}, s[48:51], s95 offen")
a("s_mov_b32 s94, 0")
a.label("L_flag")
a(f"buffer_load_dword v{FR+24}, v{FR+26}, s[60:63], 0 offen sc1")
a(f"buffer_load_dword v{FR+25}, v{FR+27}, s[60:63], 0 offen sc1")
a("s_waitcnt vmcnt(0)")
a(f"v_min_u32 v{FR+24}, v{FR+24}, v{FR+25}")
a("s_nop 0")
a(f"v_readfirstlane_b32 s15, v{FR+24}")
a("s_nop 3")
a("s_cmp_lg_u32 s15, 0")
a("s_cbranch_scc1 L_flag_ok")
a("s_sleep 8")
a("s_add_u32 s94, s94, 1")
a("s_cmp_lt_u32 s94, 0x100000")
a("s_cbranch_scc1 L_flag")
a.label("L_flag_ok")
a(f"v_mov_b32 v{FR+24}, 1")
a("v_cmp_eq_u32 vcc, 0, v1")
a("s_and_saveexec_b64 s[92:93], vcc")
a(f"buffer_atomic_add v{FR+24}, off, s[24:27], s96 offset:64")
a("s_mov_b64 exec, -1")
a("s_mov_b32 s94, 0")
a.label("L_qpoll")
a(f"buffer_load_dword v{FR+24}, off, s[24:27], s96 offset:64 sc1")
a("s_waitcnt vmcnt(0)")
a(f"v_readfirstlane_b32 s15, v{FR+24}")
a("s_nop 3")
a(f"s_cmp_ge_u32 s15, {NCHUNK}")
a("s_cbranch_scc1 L_qpoll_done")
a("s_sleep 2")
a("s_add_u32 s94, s94, 1")
a("s_cmp_lt_u32 s94, 0x100000")
a("s_cbranch_scc1 L_qpoll")
a.label("L_qpoll_done")
G = VBUF[0]
a("v_cmp_gt_u32 vcc, 60, v1")
a("s_and_saveexec_b64 s[92:93], vcc")
a("s_lshl_b32 s14, s11, 13")
a(f"s_add_u32 s14, s14, {WS_QP}")
for c in range(NCHUNK):
    if c and c % 4 == 0:
        a("s_add_u32 s14, s14, 4096")
    a(f"buffer_load_dwordx4 v[{G+4*c}:{G+4*c+3}], v{TT1}, s[24:27], s14 offen offset:{1024*(c%4)} sc1")
if HOLD:
    a("s_barrier")
a("s_waitcnt vmcnt(0)")
for e in range(4):
    a(f"v_mov_b32 v{SUM+e}, v{G+e}")
    for c in range(1, NCHUNK):
        a(f"v_add_f32 v{SUM+e}, v{SUM+e}, v{G+4*c+e}")
a(f"v_cvt_pk_bf16_f32 v{FR}, v{SUM}, v{SUM+1}")
a(f"v_cvt_pk_bf16_f32 v{FR+1}, v{SUM+2}, v{SUM+3}")
a(f"v_lshlrev_b32 v{FR+2}, 3, v1")
a("v_cmp_gt_u32 vcc, 48, v1")
a("s_and_saveexec_b64 s[100:101], vcc")
a(f"ds_write_b64 v{FR+2}, v[{FR}:{FR+1}] offset:{L_Q}")
a("s_mov_b64 exec, s[100:101]")
a(f"v_lshlrev_b32 v{SUM}, 16, v{FR}")
a(f"v_and_b32 v{SUM+1}, 0xffff0000, v{FR}")
a(f"v_lshlrev_b32 v{SUM+2}, 16, v{FR+1}")
a(f"v_and_b32 v{SUM+3}, 0xffff0000, v{FR+1}")
a(f"v_lshlrev_b32 v{FR+4}, 16, v{FR+22}")
a(f"v_and_b32 v{FR+5}, 0xffff0000, v{FR+22}")
a(f"v_lshlrev_b32 v{FR+6}, 16, v{FR+23}")
a(f"v_and_b32 v{FR+7}, 0xffff0000, v{FR+23}")
for e in range(4):
    x = SUM + e
    t = FR + 8 + e
    a(f"v_add_f32 v{x}, v{x}, v{FR+4+e}")
    rbf(a, x)
    a(f"v_mul_f32 v{t}, v{x}, v{x}")
    a(f"v_mul_f32 v{t}, {f32(0.044715)}, v{t}")
    a(f"v_add_f32 v{t}, 1.0, v{t}")
    a(f"v_mul_f32 v{t}, v{t}, v{x}")
    a(f"v_mul_f32 v{t}, {f32(-2.0*0.7978845608028654*LOG2E)}, v{t}")
    a(f"v_exp_f32 v{t}, v{t}")
    a("s_nop 1")
    a(f"v_add_f32 v{t}, 1.0, v{t}")
    a(f"v_rcp_f32 v{t}, v{t}")
    a("s_nop 1")
    a(f"v_mul_f32 v{x}, v{x}, v{t}")
    rbf(a, x)
a("v_cmp_le_u32 vcc, 48, v1")
a("s_and_b64 exec, exec, vcc")
a(f"v_lshlrev_b32 v{FR+20}, 1, v{FR+20}")
a(f"ds_write_b128 v{FR+20}, v[{SUM}:{SUM+3}] offset:{L_H}")
a("s_mov_b64 exec, -1")
a("s_waitcnt lgkmcnt(0)")
prefetch_all()
a.label("L_chain_done")
a("s_barrier")
for j in range(6):
    a(f"ds_read_b128 v[{Q+4*j}:{Q+4*j+3}], v3 offset:{L_Q+64*j}")
for k in range(2):
    a(f"v_mov_b32 v{AT[k]}, 1")
a("v_cmp_eq_u32 vcc, 0, v1")
a("s_and_saveexec_b64 s[92:93], vcc")
a(f"buffer_atomic_add v{AT[1]}, off, s[24:27], s96 sc0")
a(f"buffer_atomic_add v{AT[0]}, off, s[24:27], s96 sc0")
a("s_or_b64 exec, exec, s[92:93]")
a("s_waitcnt lgkmcnt(0)")
stamp(2)
a("v_cmp_le_u32 vcc, 24, v1")
a("v_mov_b32 v5, 0")
a(f"v_mov_b32 v{T}, 4")
a("s_nop 1")
a(f"v_cndmask_b32 v5, v5, v{T}, vcc")
for j in range(8):
    a(f"v_add_u32 v{BP+j}, {8*j}, v5")
    a(f"v_mov_b32 v{ACC+j}, 0")
a(f"v_mov_b32 v{M}, 0xff800000")
a(f"v_mov_b32 v{L}, 0")
a(f"v_mul_u32_u24 v{T}, 205, v0")
a(f"v_lshrrev_b32 v{RG}, 11, v{T}")
a(f"v_mul_u32_u24 v{T}, 10, v{RG}")
a(f"v_sub_u32 v{C24}, v0, v{T}")
a(f"v_mul_u32_u24 v7, 1280, v{RG}")
a(f"v_lshlrev_b32 v{T}, 4, v{C24}")
a(f"v_add_u32 v7, v7, v{T}")
a(f"v_mov_b32 v{T}, 0x40000000")
a("v_cmp_gt_u32 vcc, 480, v0")
a("s_nop 1")
a(f"v_cndmask_b32 v7, v{T}, v7, vcc")
KLA, VLA = WQR[0], WQR[0] + 1
a("s_mul_i32 s14, s10, 12288")
a(f"s_add_u32 s14, s14, {L_T2}")
a(f"v_add_u32 v{KLA}, s14, v2")
a(f"v_add_u32 v{VLA}, s14, v{FLATV}")

def mfma(buf):
    for j in range(6):
        c = "0" if j == 0 else f"v[{D}:{D+3}]"
        a(f"v_mfma_f32_16x16x32_bf16 v[{D}:{D+3}], v[{Q+4*j}:{Q+4*j+3}], v[{KBUF[buf]+4*j}:{KBUF[buf]+4*j+3}], {c}")

def grab(k):
    a(f"v_mov_b32 v{AT[k]}, 1")
    a("v_cmp_eq_u32 vcc, 0, v1")
    a("s_and_saveexec_b64 s[92:93], vcc")
    a(f"buffer_atomic_add v{AT[k]}, off, s[24:27], s96 sc0")
    a("s_or_b64 exec, exec, s[92:93]")

def mid(buf, vwait):
    a("s_nop 8")
    a(f"v_cvt_pk_bf16_f32 v{T}, v{D}, v{D}")
    a(f"v_lshlrev_b32 v{T}, 16, v{T}")
    a(f"v_mul_f32 v{T}, {f32(192 ** -0.5)}, v{T}")
    rbf(a, T)
    a(f"v_mul_f32 v{T}, {f32(LOG2E)}, v{T}")
    a("s_nop 1")
    a(f"v_max_f32_dpp v{T+1}, v{T}, v{T} row_ror:8 row_mask:0xf bank_mask:0xf")
    a("s_nop 1")
    a(f"v_max_f32_dpp v{T+1}, v{T+1}, v{T+1} row_ror:4 row_mask:0xf bank_mask:0xf")
    a("s_nop 1")
    a(f"v_max_f32_dpp v{T+1}, v{T+1}, v{T+1} row_ror:2 row_mask:0xf bank_mask:0xf")
    a("s_nop 1")
    a(f"v_max_f32_dpp v{T+1}, v{T+1}, v{T+1} row_ror:1 row_mask:0xf bank_mask:0xf")
    a(f"v_max_f32 v{T+1}, v{T+1}, v{M}")
    a(f"v_sub_f32 v{T+2}, v{M}, v{T+1}")
    a(f"v_sub_f32 v{T+3}, v{T}, v{T+1}")
    a(f"v_exp_f32 v{T+2}, v{T+2}")
    a(f"v_exp_f32 v{T+3}, v{T+3}")
    a(f"v_mov_b32 v{M}, v{T+1}")
    a(f"v_fma_f32 v{L}, v{L}, v{T+2}, v{T+3}")
    for j in range(8):
        a(f"ds_bpermute_b32 v{P+j}, v{BP+j}, v{T+3}")
    for j in range(8):
        a(f"v_mul_f32 v{ACC+j}, v{ACC+j}, v{T+2}")
    a("s_waitcnt lgkmcnt(0)")
    for j in range(8):
        w = vwait(j)
        if w:
            a(w)
        for r in range(4):
            wv = VBUF[buf] + 4 * j + r
            a(f"v_lshlrev_b32 v{T+4}, 16, v{wv}")
            a(f"v_and_b32 v{T+5}, 0xffff0000, v{wv}")
            a(f"v_fmac_f32 v{ACC+2*r}, v{T+4}, v{P+j}")
            a(f"v_fmac_f32 v{ACC+2*r+1}, v{T+5}, v{P+j}")

_idxn = [0]
def idx_to_off(k, sreg):
    n = _idxn[0]; _idxn[0] += 1
    a(f"v_readfirstlane_b32 s{sreg}, v{AT[k]}")
    a("s_nop 3")
    a(f"s_cmp_ge_u32 s{sreg}, 0x1000")
    a(f"s_cbranch_scc1 L_idx{n}")
    a("s_waitcnt vmcnt(0)")
    a(f"v_readfirstlane_b32 s{sreg}, v{AT[k]}")
    a("s_nop 3")
    a.label(f"L_idx{n}")
    a(f"s_sub_u32 s{sreg}, s{sreg}, {0x1000 - NSTAT}")

a("s_waitcnt vmcnt(0)")
mfma(0)
EXPG = os.environ.get("EXPG", "0")
if EXPG == "1":
    a(f"s_add_u32 s91, s90, {128*16*384}")
    load_k(0, 91)
    mid(0, lambda j: None)
    load_v(0, 91)
    a("s_waitcnt vmcnt(0)")
else:
    for j in range(6):
        a(f"ds_read_b128 v[{KBUF[0]+4*j}:{KBUF[0]+4*j+3}], v{KLA} offset:{64*j}")
    mid(0, lambda j: None)
    for j in range(8):
        a(f"ds_read_b128 v[{VBUF[0]+4*j}:{VBUF[0]+4*j+3}], v{VLA} offset:{6144+768*j}")
mfma(1)
idx_to_off(1, 91)
a(f"s_mul_i32 s91, s91, {16*384}")
load_k(1, 91)
grab(1)
mid(1, lambda j: None)
load_v(1, 91)
a("s_waitcnt lgkmcnt(0)")
mfma(0)
idx_to_off(0, 91)
a(f"s_mul_i32 s91, s91, {16*384}")
load_k(0, 91)
grab(0)
mid(0, lambda j: None)
load_v(0, 91)
def tail_loads(buf):
    kb = KBUF[buf]
    a(f"s_mul_i32 s14, s11, {192*1280}")
    a("s_mul_i32 s15, s12, 160")
    a("s_add_u32 s14, s14, s15")
    for i in range(4):
        a(f"buffer_load_dwordx4 v[{kb+4*i}:{kb+4*i+3}], v7, s[40:43], s14 offen")
        a(f"s_add_u32 s14, s14, {48*1280}")
    a(f"s_mul_i32 s14, s11, {48*1280}")
    a("s_add_u32 s14, s14, s15")
    a(f"buffer_load_dwordx4 v[{kb+16}:{kb+19}], v7, s[44:47], s14 offen")

a.label("L_loop")
for buf in (1, 0):
    a("s_waitcnt vmcnt(22)")
    mfma(buf)
    idx_to_off(buf, 91)
    a(f"s_cmp_ge_u32 s91, {NT_HEAD}")
    a(f"s_cbranch_scc1 L_drain{buf}")
    a(f"s_mul_i32 s91, s91, {16*384}")
    load_k(buf, 91)
    grab(buf)
    mid(buf, lambda j: f"s_waitcnt vmcnt({20 + 7 - j})")
    load_v(buf, 91)
a("s_branch L_loop")
for buf in (1, 0):
    other = 1 - buf
    a.label(f"L_drain{buf}")
    tail_loads(buf)
    mid(buf, lambda j: f"s_waitcnt vmcnt({19 + 7 - j})")
    a("s_waitcnt vmcnt(13)")
    mfma(other)
    mid(other, lambda j: f"s_waitcnt vmcnt({5 + 7 - j})")
    a(f"s_mov_b32 s94, {KBUF[buf]}")
    a(f"s_branch L_fin{buf}")
stamp_done = False

def finish(buf):
    KB = KBUF[buf]
    R = VBUF[0]
    sfx = str(buf)
    if buf == 1:
        stamp(3)
    a("s_nop 1")
    for sh in (8, 4, 2, 1):
        a(f"v_add_f32_dpp v{L}, v{L}, v{L} row_ror:{sh} row_mask:0xf bank_mask:0xf")
        a("s_nop 1")
    a("s_lshl_b32 s14, s10, 2")
    a(f"v_mov_b32 v{T}, s14")
    a(f"ds_write_b32 v{T}, v{M} offset:{L_WM}")
    a(f"ds_write_b32 v{T}, v{L} offset:{L_WM+64}")
    a("s_mul_i32 s14, s10, 1536")
    a(f"v_lshlrev_b32 v{T}, 5, v1")
    a(f"v_add_u32 v{T}, s14, v{T}")
    a("v_cmp_gt_u32 vcc, 48, v1")
    a("s_and_saveexec_b64 s[92:93], vcc")
    a(f"ds_write_b128 v{T}, v[{ACC}:{ACC+3}] offset:{L_ACC}")
    a(f"ds_write_b128 v{T}, v[{ACC+4}:{ACC+7}] offset:{L_ACC+16}")
    a("s_or_b64 exec, exec, s[92:93]")
    a("s_waitcnt vmcnt(0)")
    for i in range(20):
        a(f"v_mov_b32 v{WQR[1]+i}, v{KB+i}")
    if buf == 0:
        a("s_branch L_common")

a.label("L_fin0")
finish(0)
a.label("L_fin1")
finish(1)
a.label("L_common")
KB = WQR[1]
R = VBUF[0]
a("s_waitcnt lgkmcnt(0)")
a("s_barrier")
a("v_cmp_gt_u32 vcc, 192, v0")
a("s_and_saveexec_b64 s[92:93], vcc")
a("s_cbranch_execz L_rec_done")
a(f"v_mov_b32 v{T}, 0")
a(f"v_lshlrev_b32 v{T+1}, 2, v0")
for w in range(NW):
    a(f"ds_read_b32 v{R+w}, v{T} offset:{L_WM+4*w}")
    a(f"ds_read_b32 v{R+8+w}, v{T} offset:{L_WM+64+4*w}")
    a(f"ds_read_b32 v{R+16+2*w}, v{T+1} offset:{L_ACC+1536*w}")
    a(f"ds_read_b32 v{R+17+2*w}, v{T+1} offset:{L_ACC+1536*w+768}")
a("s_waitcnt lgkmcnt(0)")
a(f"v_mov_b32 v{T+2}, v{R}")
for w in range(1, NW):
    a(f"v_max_f32 v{T+2}, v{T+2}, v{R+w}")
a(f"v_mov_b32 v{T+3}, 0")
a(f"v_mov_b32 v{T+4}, 0")
for w in range(NW):
    a(f"v_sub_f32 v{T+5}, v{R+w}, v{T+2}")
    a(f"v_exp_f32 v{T+5}, v{T+5}")
    a(f"v_add_f32 v{P}, v{R+16+2*w}, v{R+17+2*w}")
    a(f"v_fmac_f32 v{T+3}, v{T+5}, v{R+8+w}")
    a(f"v_fmac_f32 v{T+4}, v{T+5}, v{P}")
a("s_lshl_b32 s14, s2, 10")
a(f"s_add_u32 s14, s14, {WS_PART}")
a(f"buffer_store_dword v{T+4}, v{T+1}, s[24:27], s14 offen sc1")
a("v_cmp_eq_u32 vcc, 0, v0")
a("s_and_saveexec_b64 s[100:101], vcc")
a(f"buffer_store_dword v{T+2}, v{T+1}, s[24:27], s14 offen offset:768 sc1")
a(f"buffer_store_dword v{T+3}, v{T+1}, s[24:27], s14 offen offset:772 sc1")
a.label("L_rec_done")
a("s_mov_b64 exec, -1")
a("s_waitcnt vmcnt(0)")
a("s_barrier")
stamp(4)
a("s_cmp_lg_u32 s10, 0")
a("s_cbranch_scc1 L_poll_done")
a(f"v_mov_b32 v{T+1}, 1")
a("v_cmp_eq_u32 vcc, 0, v0")
a("s_and_saveexec_b64 s[92:93], vcc")
a(f"buffer_atomic_add v{T+1}, off, s[24:27], s96 offset:128")
a("s_or_b64 exec, exec, s[92:93]")
a("s_mov_b32 s15, 0")
a.label("L_poll")
a(f"buffer_load_dword v{T+1}, off, s[24:27], s96 offset:128 sc1")
a("s_waitcnt vmcnt(0)")
a(f"v_readfirstlane_b32 s14, v{T+1}")
a("s_nop 3")
a(f"s_cmp_ge_u32 s14, {NCHUNK}")
a("s_cbranch_scc1 L_poll_done")
a("s_sleep 2")
a("s_add_u32 s15, s15, 1")
a("s_cmp_lt_u32 s15, 0x100000")
a("s_cbranch_scc1 L_poll")
a.label("L_poll_done")
a("s_barrier")
stamp(5)
a("v_cmp_gt_u32 vcc, 192, v0")
a("s_and_saveexec_b64 s[92:93], vcc")
a("s_cbranch_execz L_o_done")
a("s_lshl_b32 s14, s11, 13")
a(f"s_add_u32 s14, s14, {WS_PART}")
a(f"v_lshlrev_b32 v{T+1}, 2, v0")
a(f"v_mov_b32 v{T}, 0")
for c in range(NCHUNK):
    if c and c % 4 == 0:
        a("s_add_u32 s14, s14, 4096")
    a(f"buffer_load_dword v{R+c}, v{T+1}, s[24:27], s14 offen offset:{1024*(c%4)} sc1")
    a(f"buffer_load_dwordx2 v[{R+8+2*c}:{R+9+2*c}], v{T}, s[24:27], s14 offen offset:{1024*(c%4)+768} sc1")
a("s_waitcnt vmcnt(0)")
a(f"v_mov_b32 v{T+2}, v{R+8}")
for c in range(1, NCHUNK):
    a(f"v_max_f32 v{T+2}, v{T+2}, v{R+8+2*c}")
a(f"v_mov_b32 v{T+3}, 0")
a(f"v_mov_b32 v{T+4}, 0")
for c in range(NCHUNK):
    a(f"v_sub_f32 v{T+5}, v{R+8+2*c}, v{T+2}")
    a(f"v_exp_f32 v{T+5}, v{T+5}")
    a("s_nop 0")
    a(f"v_fmac_f32 v{T+3}, v{T+5}, v{R+9+2*c}")
    a(f"v_fmac_f32 v{T+4}, v{T+5}, v{R+c}")
a(f"v_rcp_f32 v{T+5}, v{T+3}")
a("s_nop 1")
a(f"v_fma_f32 v{T+2}, -v{T+3}, v{T+5}, 1.0")
a(f"v_fmac_f32 v{T+5}, v{T+2}, v{T+5}")
a(f"v_mul_f32 v{T+4}, v{T+4}, v{T+5}")
rbf(a, T + 4)
a(f"ds_write_b32 v{T+1}, v{T+4} offset:{L_O}")
a.label("L_o_done")
a("s_mov_b64 exec, -1")
a("s_waitcnt lgkmcnt(0)")
a("s_barrier")
a(f"v_lshlrev_b32 v5, 2, v{RG}")
for i in range(4):
    a(f"ds_read_b32 v{R+i}, v5 offset:{L_O + 48*4*i}")
a(f"ds_read_b32 v{R+4}, v5 offset:{L_H}")
for r in range(8):
    a(f"v_mov_b32 v{ACC+r}, 0")
a("s_waitcnt lgkmcnt(0)")
for i in range(4):
    for r in range(4):
        a(f"v_lshlrev_b32 v{T+4}, 16, v{KB+4*i+r}")
        a(f"v_and_b32 v{T+5}, 0xffff0000, v{KB+4*i+r}")
        a(f"v_fmac_f32 v{ACC+2*r}, v{T+4}, v{R+i}")
        a(f"v_fmac_f32 v{ACC+2*r+1}, v{T+5}, v{R+i}")
for r in range(4):
    a(f"v_lshlrev_b32 v{T+4}, 16, v{KB+16+r}")
    a(f"v_and_b32 v{T+5}, 0xffff0000, v{KB+16+r}")
    a(f"v_mul_f32 v{P+2*r}, v{T+4}, v{R+4}")
    a(f"v_mul_f32 v{P+2*r+1}, v{T+5}, v{R+4}")
a(f"v_mul_u32_u24 v5, 640, v{RG}")
a(f"v_lshlrev_b32 v{T}, 5, v{C24}")
a(f"v_add_u32 v5, v5, v{T}")
a("v_cmp_gt_u32 vcc, 480, v0")
a("s_and_saveexec_b64 s[92:93], vcc")
a(f"ds_write_b128 v5, v[{ACC}:{ACC+3}] offset:{L_RED}")
a(f"ds_write_b128 v5, v[{ACC+4}:{ACC+7}] offset:{L_RED+16}")
a(f"ds_write_b128 v5, v[{P}:{P+3}] offset:{L_RED+320}")
a(f"ds_write_b128 v5, v[{P+4}:{P+7}] offset:{L_RED+336}")
a("s_or_b64 exec, exec, s[92:93]")
a("s_waitcnt lgkmcnt(0)")
a("s_barrier")
a("v_cmp_gt_u32 vcc, 160, v0")
a("s_and_saveexec_b64 s[92:93], vcc")
a("s_cbranch_execz L_outp_done")
a("v_lshlrev_b32 v5, 2, v0")
for blk in range(2):
    for r in range(24):
        a(f"ds_read_b32 v{R+r}, v5 offset:{L_RED + (blk*24+r)*640}")
    a("s_waitcnt lgkmcnt(0)")
    for r in range(24):
        if blk == 0 and r == 0:
            a(f"v_mov_b32 v{T}, v{R}")
        else:
            a(f"v_add_f32 v{T}, v{T}, v{R+r}")
a("s_mul_i32 s14, s12, 20480")
a("s_mul_i32 s15, s11, 640")
a("s_add_u32 s14, s14, s15")
a(f"s_add_u32 s14, s14, {WS_OUTP}")
a(f"buffer_store_dword v{T}, v5, s[24:27], s14 offen sc1")
a.label("L_outp_done")
a("s_mov_b64 exec, -1")
a("s_waitcnt vmcnt(0)")
a("s_barrier")
stamp(6)
a(f"v_mov_b32 v{T}, 0")
a("v_cmp_eq_u32 vcc, 0, v0")
a("s_and_saveexec_b64 s[92:93], vcc")
a("s_lshl_b32 s14, s12, 8")
a(f"s_add_u32 s14, s14, {WS_CG}")
a(f"v_mov_b32 v{T+2}, 1")
a(f"buffer_atomic_add v{T+2}, off, s[24:27], s14 sc0")
a("s_waitcnt vmcnt(0)")
a(f"ds_write_b32 v{T}, v{T+2} offset:{L_FLAG}")
a("s_or_b64 exec, exec, s[92:93]")
a("s_waitcnt lgkmcnt(0)")
a("s_barrier")
a(f"ds_read_b32 v{T+2}, v{T} offset:{L_FLAG}")
a("s_waitcnt lgkmcnt(0)")
a(f"v_readfirstlane_b32 s14, v{T+2}")
a("s_nop 3")
a("s_cmp_lg_u32 s14, 31")
a("s_cbranch_scc1 L_done")
a("v_cmp_gt_u32 vcc, 160, v0")
a("s_and_saveexec_b64 s[92:93], vcc")
a("v_lshlrev_b32 v5, 2, v0")
a("s_mul_i32 s14, s12, 20480")
a(f"s_add_u32 s14, s14, {WS_OUTP}")
F = KBUF[0]
for hh in range(32):
    if hh and hh % 4 == 0:
        a("s_add_u32 s14, s14, 2560")
    a(f"buffer_load_dword v{F+hh}, v5, s[24:27], s14 offen offset:{640*(hh%4)} sc1")
a(f"v_subrev_u32 v{T+1}, 80, v0")
a("v_cmp_gt_u32 vcc, 80, v0")
a("s_nop 1")
a(f"v_cndmask_b32 v{T+1}, v{T+1}, v0, vcc")
a(f"v_lshlrev_b32 v{T+1}, 1, v{T+1}")
a("s_mul_i32 s15, s12, 160")
a(f"buffer_load_ushort v{T+2}, v{T+1}, s[36:39], s15 offen")
a(f"buffer_load_ushort v{T+3}, v{T+1}, s[52:55], s15 offen")
a("s_waitcnt vmcnt(0)")
a(f"v_mov_b32 v{T}, v{F}")
for hh in range(1, 32):
    a(f"v_add_f32 v{T}, v{T}, v{F+hh}")
rbf(a, T)
a(f"v_lshlrev_b32 v{T+3}, 16, v{T+3}")
a(f"v_add_f32 v{T+4}, v{T}, v{T+3}")
rbf(a, T + 4)
a(f"v_mul_f32 v{T+5}, {f32(-LOG2E)}, v{T+4}")
a(f"v_exp_f32 v{T+5}, v{T+5}")
a("s_nop 1")
a(f"v_add_f32 v{T+5}, 1.0, v{T+5}")
a(f"v_rcp_f32 v{T+5}, v{T+5}")
a("s_nop 1")
a(f"v_mul_f32 v{T+4}, v{T+4}, v{T+5}")
rbf(a, T + 4)
a(f"ds_write_b32 v5, v{T+4} offset:{L_RED}")
a("s_or_b64 exec, exec, s[92:93]")
a("s_waitcnt lgkmcnt(0)")
a("s_barrier")
a("v_cmp_gt_u32 vcc, 80, v0")
a("s_and_saveexec_b64 s[92:93], vcc")
a("s_cbranch_execz L_done")
a(f"ds_read_b32 v{T+4}, v5 offset:{L_RED+320}")
a("s_waitcnt lgkmcnt(0)")
a(f"v_mul_f32 v{T}, v{T}, v{T+4}")
rbf(a, T)
a(f"v_lshlrev_b32 v{T+2}, 16, v{T+2}")
a(f"v_add_f32 v{T}, v{T}, v{T+2}")
a(f"v_cvt_pk_bf16_f32 v{T}, v{T}, v{T}")
a(f"buffer_store_short v{T}, v{T+1}, s[56:59], s15 offen")
a("s_mov_b64 exec, -1")
stamp(7)
a.label("L_done")
a("s_endpgm")

out += a.text()
nv = 254 if DIAG else NV
out += f""".section .rodata,"a"
.p2align 6
.amdhsa_kernel {KN}
  .amdhsa_next_free_vgpr {nv}
  .amdhsa_next_free_sgpr 102
  .amdhsa_accum_offset {(nv+3)//4*4}
  .amdhsa_group_segment_fixed_size 0
  .amdhsa_kernarg_size 104
  .amdhsa_user_sgpr_count 2
  .amdhsa_user_sgpr_kernarg_segment_ptr 1
  .amdhsa_system_sgpr_workgroup_id_x 1
.end_amdhsa_kernel
"""
open(OUT, "w").write(out)
print("wrote", OUT, len(out), "vgpr", nv, "lds", LDS_BYTES)
```

```python
import struct, sys, os, re, math

NAME = "recurrent_scan__gqa_block_cached__mixer_channel_mlp__decode"
OUT = os.environ.get("OUT", "cdna_kernels/%s.s" % NAME)
DIAG = os.environ.get("DIAG", "0") == "1"

NW = 8
NCHUNK = 8
SK = 8192
NT_HEAD = SK // 16
NSTAT = 3 * NW * NCHUNK

WS_CTR = 0
WS_CG = 32 * 256
WS_PART = 65536
WS_OUTP = WS_PART + 32 * NCHUNK * 1024
WS_QP = WS_OUTP + 8 * 32 * 640
WS_SIZE = 402653184

KA_X, KA_K, KA_V, KA_WQ, KA_WO, KA_BX, KA_W1, KA_B1, KA_W2, KA_B2, KA_OUT, KA_DBG, KA_WS = [8 * i for i in range(13)]

L_XN = 0
L_Y = 2560
L_RED = 5120
L_ACC = 5120
L_Q = 35840
L_H = 36224
L_WM = 36416
L_O = 36544
L_FLAG = 37312
L_T2 = 37376
LDS_BYTES = L_T2 + NW * 12288

def f32(x):
    return "0x%08x" % struct.unpack("<I", struct.pack("<f", x))[0]
LOG2E = 1.4426950408889634
for t in range(480):
    assert (t * 171) >> 12 == t // 24 and (t * 171) >> 10 == t // 6 and (t * 205) >> 11 == t // 10

class A:
    def __init__(self):
        self.l = []
    def __call__(self, s):
        for line in s.split("\n"):
            line = line.strip()
            m = re.search(r"offset:(\d+)", line)
            if m and line.startswith("buffer_"):
                assert int(m.group(1)) <= 4095, line
            if m and line.startswith("ds_"):
                assert int(m.group(1)) <= 65535, line
            self.l.append("    " + line)
    def label(self, s):
        self.l.append(s + ":")
    def text(self):
        return "\n".join(self.l) + "\n"

def srd(a, d, b, nbytes, add=None):
    if add is None:
        a(f"s_mov_b32 s{d}, s{b}")
        a(f"s_and_b32 s{d+1}, s{b+1}, 0xffff")
    else:
        a(f"s_add_u32 s{d}, s{b}, {add}")
        a(f"s_addc_u32 s{d+1}, s{b+1}, 0")
        a(f"s_and_b32 s{d+1}, s{d+1}, 0xffff")
    a(f"s_mov_b32 s{d+2}, {nbytes}")
    a(f"s_mov_b32 s{d+3}, 0x00020000")

def rbf(a, v):
    a(f"v_cvt_pk_bf16_f32 v{v}, v{v}, v{v}")
    a(f"v_lshlrev_b32 v{v}, 16, v{v}")

def wave_sum(a, v, s):
    a("s_nop 1")
    for sh in (1, 2, 4, 8):
        a(f"v_add_f32_dpp v{v}, v{v}, v{v} row_shr:{sh} row_mask:0xf bank_mask:0xf bound_ctrl:0")
        a("s_nop 1")
    a(f"v_add_f32_dpp v{v}, v{v}, v{v} row_bcast:15 row_mask:0xa bank_mask:0xf")
    a("s_nop 1")
    a(f"v_add_f32_dpp v{v}, v{v}, v{v} row_bcast:31 row_mask:0xc bank_mask:0xf")
    a("s_nop 1")
    a(f"v_readlane_b32 s{s}, v{v}, 63")
    a("s_nop 3")

def layernorm(a, e, t0, t1, t2, s):
    a(f"v_add_f32 v{t0}, v{e}, v{e+1}")
    for i in range(2, 10):
        a(f"v_add_f32 v{t0}, v{t0}, v{e+i}")
    wave_sum(a, t0, s)
    a(f"v_mov_b32 v{t1}, s{s}")
    a(f"v_mul_f32 v{t1}, {f32(1.0/640)}, v{t1}")
    a(f"v_mov_b32 v{t0}, 0")
    for i in range(10):
        a(f"v_sub_f32 v{t2}, v{e+i}, v{t1}")
        a(f"v_fmac_f32 v{t0}, v{t2}, v{t2}")
    wave_sum(a, t0, s)
    a(f"v_mov_b32 v{t0}, s{s}")
    a(f"v_mul_f32 v{t0}, {f32(1.0/640)}, v{t0}")
    rbf(a, t0)
    rbf(a, t1)
    a(f"v_add_f32 v{t0}, {f32(1e-5)}, v{t0}")
    rbf(a, t0)
    a(f"v_sqrt_f32 v{t0}, v{t0}")
    a("s_nop 1")
    rbf(a, t0)
    a(f"v_rcp_f32 v{t2}, v{t0}")
    a("s_nop 1")
    a(f"v_fma_f32 v{t0}, -v{t0}, v{t2}, 1.0")
    a(f"v_fmac_f32 v{t2}, v{t0}, v{t2}")
    for i in range(10):
        a(f"v_sub_f32 v{e+i}, v{e+i}, v{t1}")
        rbf(a, e + i)
        a(f"v_mul_f32 v{e+i}, v{e+i}, v{t2}")
        rbf(a, e + i)

def stamp(i):
    if not DIAG:
        return
    a(f"s_cmp_lg_u32 s10, 0")
    a(f"s_cbranch_scc1 L_st{i}")
    a("s_memrealtime s[4:5]")
    a("s_waitcnt lgkmcnt(0)")
    a("s_lshl_b32 s6, s2, 6")
    a(f"s_add_u32 s6, s6, {(1<<20) + 8*i}")
    a("v_mov_b32 v252, s4")
    a("v_mov_b32 v253, s5")
    a("s_mov_b64 s[4:5], exec")
    a("s_mov_b64 exec, 1")
    a("buffer_store_dwordx2 v[252:253], off, s[24:27], s6")
    a("s_mov_b64 exec, s[4:5]")
    a.label(f"L_st{i}")

a = A()
hdr = open("cdna_kernels/%s.s.ref" % NAME).read().split("\n")
comment = [l for l in hdr if l.startswith(";") and "@launch" not in l]
out = "\n".join(comment) + "\n"
out += f"; @launch grid=({32*NCHUNK},1,1) block=({64*NW},1,1) lds={LDS_BYTES}\n"
out += '.amdgcn_target "amdgcn-amd-amdhsa--gfx950"\n.text\n'
KN = NAME + "_kernel"
a(f".globl {KN}")
a(".p2align 8")
a(f".type {KN},@function")
a.label(KN)

Q = 8
KBUF = [32, 88]
VBUF = [56, 112]
ACC = 144
M, L = 152, 153
T = 154
P = 160
D = 168
BP = 172
RG, C24, HV, FLATV = 180, 181, 184, 185
AT = [182, 183]
W1V, RG6A, C6 = 186, 187, D + 3
WS0 = 188
NSLOT = 16
WQR = [WS0 + 4 * i for i in range(NSLOT)]
NV = WS0 + 4 * NSLOT
QA = ACC
XV = P
TT0, TT1 = T, T + 1

a(f"s_cmp_ge_u32 s2, {32*NCHUNK}")
a("s_cbranch_scc1 L_done")
a(f"s_load_dwordx4 s[64:67], s[0:1], {KA_X}")
a(f"s_load_dwordx4 s[68:71], s[0:1], {KA_V}")
a(f"s_load_dwordx2 s[72:73], s[0:1], {KA_WO}")
a(f"s_load_dwordx4 s[76:79], s[0:1], {KA_W1}")
a(f"s_load_dwordx4 s[80:83], s[0:1], {KA_W2}")
a(f"s_load_dwordx4 s[84:87], s[0:1], {KA_OUT}")
a(f"s_load_dwordx2 s[88:89], s[0:1], {KA_WS}")
a("v_lshrrev_b32 v1, 6, v0")
a("s_nop 0")
a("v_readfirstlane_b32 s10, v1")
a("v_and_b32 v1, 63, v0")
a("s_lshr_b32 s11, s2, 3")
a("s_and_b32 s12, s2, 7")
a("s_mul_i32 s13, s11, 3145728")
a("v_and_b32 v2, 15, v1")
a("v_mul_u32_u24 v2, 384, v2")
a("v_lshrrev_b32 v3, 4, v1")
a("v_lshlrev_b32 v3, 4, v3")
a("v_add_u32 v2, v2, v3")
a(f"v_lshlrev_b32 v{FLATV}, 4, v1")
a(f"v_add_u32 v{HV}, 4096, v{FLATV}")
a("v_mov_b32 v5, 0x40000000")
a("v_cmp_gt_u32 vcc, 48, v1")
a("s_nop 1")
a(f"v_cndmask_b32 v4, v5, v{FLATV}, vcc")
a("v_add_u32 v6, 3072, v4")
a(f"v_mul_u32_u24 v{TT0}, 171, v0")
a(f"v_lshrrev_b32 v{RG}, 12, v{TT0}")
a(f"v_mul_u32_u24 v{TT1}, 24, v{RG}")
a(f"v_sub_u32 v{C24}, v0, v{TT1}")
a(f"v_lshrrev_b32 v{TT0}, 10, v{TT0}")
a(f"v_mul_u32_u24 v{TT1}, 6, v{TT0}")
a(f"v_sub_u32 v{C6}, v0, v{TT1}")
a(f"v_mul_u32_u24 v{W1V}, 3072, v{TT0}")
a(f"v_lshlrev_b32 v{TT1}, 4, v{C6}")
a(f"v_add_u32 v{W1V}, v{W1V}, v{TT1}")
a(f"v_lshlrev_b32 v{RG6A}, 2, v{TT0}")
a("s_mov_b32 s14, 12288")
a(f"v_mul_lo_u32 v7, v{RG}, s14")
a(f"v_lshlrev_b32 v{TT1}, 4, v{C24}")
a(f"v_add_u32 v7, v7, v{TT1}")
a("v_mov_b32 v5, 0x40000000")
a("v_cmp_gt_u32 vcc, 480, v0")
a("s_nop 1")
a("v_cndmask_b32 v7, v5, v7, vcc")
a(f"v_cndmask_b32 v{W1V}, v5, v{W1V}, vcc")
a("s_lshl_b32 s90, s12, 3")
a("s_add_u32 s90, s90, s10")
a(f"s_mul_i32 s90, s90, {16*384}")
a("s_lshl_b32 s96, s11, 8")
a(f"s_add_u32 s96, s96, {WS_CTR}")
a("s_waitcnt lgkmcnt(0)")
srd(a, 36, 64, 1280)
srd(a, 16, 66, 3145728, add="s13")
srd(a, 20, 68, 3145728, add="s13")
srd(a, 28, 70, 640 * 12288)
srd(a, 32, 76, 640 * 3072)
srd(a, 24, 88, WS_SIZE)
srd(a, 60, 86, 256)
stamp(0)
XR = Q + 18
E = Q
a("v_lshlrev_b32 v5, 2, v1")
for i in range(5):
    a(f"buffer_load_dword v{XR+i}, v5, s[36:39], 0 offen offset:{256*i}")
a("s_cmp_lg_u32 s10, 0")
a("s_cbranch_scc1 L_init_done")
a(f"v_mov_b32 v{TT0}, 0")
a(f"v_lshlrev_b32 v{TT1}, 6, v1")
a("s_cmp_lg_u32 s12, 0")
a("s_cbranch_scc1 L_init_cg")
a("v_cmp_eq_u32 vcc, 0, v1")
a(f"v_mov_b32 v{TT0+3}, 0x1000")
a("s_nop 0")
a(f"v_cndmask_b32 v{TT0+3}, v{TT0}, v{TT0+3}, vcc")
a("v_cmp_gt_u32 vcc, 3, v1")
a("s_and_saveexec_b64 s[92:93], vcc")
a(f"buffer_store_dword v{TT0+3}, v{TT1}, s[24:27], s96 offen sc1")
a("s_mov_b64 exec, -1")
a("s_waitcnt vmcnt(0)")
a("s_lshl_b32 s14, s11, 2")
a(f"v_mov_b32 v{TT1}, s14")
a(f"v_mov_b32 v{TT0+2}, 1")
a("v_cmp_eq_u32 vcc, 0, v1")
a("s_and_saveexec_b64 s[92:93], vcc")
a(f"buffer_atomic_add v{TT0+2}, v{TT1}, s[60:63], 0 offen")
a("s_mov_b64 exec, -1")
a.label("L_init_cg")
a("s_cmp_lg_u32 s11, 0")
a("s_cbranch_scc1 L_init_done")
a("s_lshl_b32 s14, s12, 8")
a(f"s_add_u32 s14, s14, {WS_CG}")
a("v_cmp_eq_u32 vcc, 0, v1")
a("s_and_saveexec_b64 s[92:93], vcc")
a(f"buffer_store_dword v{TT0}, off, s[24:27], s14 sc1")
a("s_waitcnt vmcnt(0)")
a("s_lshl_b32 s14, s12, 2")
a("s_add_u32 s14, s14, 128")
a(f"v_mov_b32 v{TT1}, s14")
a(f"v_mov_b32 v{TT0+2}, 1")
a(f"buffer_atomic_add v{TT0+2}, v{TT1}, s[60:63], 0 offen")
a("s_mov_b64 exec, -1")
a.label("L_init_done")
a("s_mul_i32 s14, s11, 384")
a(f"s_mul_i32 s15, s12, {80*12288}")
a("s_add_u32 s14, s14, s15")
a("s_mul_i32 s95, s11, 96")
a(f"s_mul_i32 s15, s12, {80*3072}")
a("s_add_u32 s15, s95, s15")
for i in range(4):
    if i:
        a(f"s_add_u32 s14, s14, {20*12288}")
    a(f"buffer_load_dwordx4 v[{WQR[i]}:{WQR[i]+3}], v7, s[28:31], s14 offen")
a(f"buffer_load_dwordx4 v[{WQR[4]}:{WQR[4]+3}], v{W1V}, s[32:35], s15 offen")
def k_ins(buf, soff):
    if os.environ.get("FLATK") == "1":
        return [f"buffer_load_dwordx4 v[{KBUF[buf]+4*j}:{KBUF[buf]+4*j+3}], v{FLATV if j < 4 else HV}, s[16:19], s{soff} offen offset:{1024*(j%4)} nt" for j in range(6)]
    return [f"buffer_load_dwordx4 v[{KBUF[buf]+4*j}:{KBUF[buf]+4*j+3}], v2, s[16:19], s{soff} offen offset:{64*j} nt" for j in range(6)]
def v_ins(buf, soff):
    return [f"buffer_load_dwordx4 v[{VBUF[buf]+4*j}:{VBUF[buf]+4*j+3}], v{4 if j < 4 else 6}, s[20:23], s{soff} offen offset:{768*(j%4)} nt" for j in range(8)]
def load_k(buf, soff):
    for l in k_ins(buf, soff):
        a(l)
def load_v(buf, soff):
    for l in v_ins(buf, soff):
        a(l)
a(f"s_add_u32 s91, s90, {64*16*384}")
a(f"s_add_u32 s99, s90, {128*16*384}")
a("s_mul_i32 s94, s10, 12288")
a(f"s_add_u32 s98, s94, {L_T2}")
EARLY = int(os.environ.get("EARLY", "0"))
def prefetch_all(first=True):
    if first:
        load_k(0, 90)
        load_v(0, 90)
    load_k(1, 91)
    load_v(1, 91)
    for half, sr in ((0, 16), (1, 20)):
        for grp in range(2):
            a(f"s_add_u32 s94, s98, {half*6144 + grp*3072}")
            a("s_mov_b32 m0, s94")
            a(f"s_add_u32 s94, s99, {grp*3072}")
            for j in range(3):
                a(f"buffer_load_dwordx4 v{FLATV}, s[{sr}:{sr+3}], s94 offen offset:{1024*j} nt lds")
srd(a, 40, 72, 6144 * 1280)
srd(a, 48, 78, 3072)
srd(a, 44, 80, 1536 * 1280)
srd(a, 52, 82, 1280)
srd(a, 56, 84, 1280)
if EARLY:
    a("s_cmp_eq_u32 s10, 0")
    a("s_cbranch_scc1 L_noearly")
    load_k(0, 90)
    load_v(0, 90)
    a("s_waitcnt vmcnt(19)")
    a("s_branch L_early_done")
    a.label("L_noearly")
    a("s_waitcnt vmcnt(5)")
    a.label("L_early_done")
else:
    a("s_waitcnt vmcnt(5)")
for i in range(5):
    a(f"v_lshlrev_b32 v{E+2*i}, 16, v{XR+i}")
    a(f"v_and_b32 v{E+2*i+1}, 0xffff0000, v{XR+i}")
t0, t1, t2 = Q + 12, Q + 13, Q + 14
layernorm(a, E, t0, t1, t2, 15)
a("v_lshlrev_b32 v5, 3, v1")
for i in range(5):
    a(f"ds_write_b64 v5, v[{E+2*i}:{E+2*i+1}] offset:{L_XN+512*i}")
layernorm(a, E, t0, t1, t2, 15)
for i in range(5):
    a(f"ds_write_b64 v5, v[{E+2*i}:{E+2*i+1}] offset:{L_Y+512*i}")
a("s_waitcnt lgkmcnt(0)")
a("s_barrier")
stamp(1)
for r in range(8):
    a(f"v_mov_b32 v{QA+r}, 0")
a("s_mul_i32 s15, s12, 320")
a(f"v_lshlrev_b32 v5, 2, v{RG}")
a("v_add_u32 v5, s15, v5")
a(f"v_add_u32 v{TT0}, s15, v{RG6A}")
XQ = P
for i in range(4):
    a(f"ds_read_b32 v{XQ+i}, v5 offset:{L_XN + i*80}")
a(f"ds_read_b32 v{XQ+4}, v{TT0} offset:{L_Y}")
a(f"s_waitcnt vmcnt({14 if EARLY else 0}) lgkmcnt(0)")
if EARLY:
    a("s_cmp_lg_u32 s10, 0")
    a("s_cbranch_scc1 L_e2")
    a("s_waitcnt vmcnt(0)")
    a.label("L_e2")
for i in range(4):
    reg = WQR[i]
    for r in range(4):
        a(f"v_lshlrev_b32 v{TT0}, 16, v{reg+r}")
        a(f"v_and_b32 v{TT1}, 0xffff0000, v{reg+r}")
        a(f"v_fmac_f32 v{QA+2*r}, v{TT0}, v{XQ+i}")
        a(f"v_fmac_f32 v{QA+2*r+1}, v{TT1}, v{XQ+i}")
a(f"v_mul_u32_u24 v{TT0}, 768, v{RG}")
a(f"v_lshlrev_b32 v{TT1}, 5, v{C24}")
a(f"v_add_u32 v{TT0}, v{TT0}, v{TT1}")
a("v_cmp_gt_u32 vcc, 480, v0")
a("s_and_saveexec_b64 s[92:93], vcc")
a(f"ds_write_b128 v{TT0}, v[{QA}:{QA+3}] offset:{L_RED}")
a(f"ds_write_b128 v{TT0}, v[{QA+4}:{QA+7}] offset:{L_RED+16}")
a("s_or_b64 exec, exec, s[92:93]")
reg = WQR[4]
for r in range(4):
    a(f"v_lshlrev_b32 v{TT0}, 16, v{reg+r}")
    a(f"v_and_b32 v{TT1}, 0xffff0000, v{reg+r}")
    a(f"v_mul_f32 v{QA+2*r}, v{TT0}, v{XQ+4}")
    a(f"v_mul_f32 v{QA+2*r+1}, v{TT1}, v{XQ+4}")
a(f"v_mul_u32_u24 v{TT0}, 48, v{RG6A}")
a(f"v_lshlrev_b32 v{TT1}, 5, v{C6}")
a(f"v_add_u32 v{TT0}, v{TT0}, v{TT1}")
a("v_cmp_gt_u32 vcc, 480, v0")
a("s_and_saveexec_b64 s[92:93], vcc")
a(f"ds_write_b128 v{TT0}, v[{QA}:{QA+3}] offset:{L_RED+15360}")
a(f"ds_write_b128 v{TT0}, v[{QA+4}:{QA+7}] offset:{L_RED+15360+16}")
a("s_or_b64 exec, exec, s[92:93]")
a("s_waitcnt lgkmcnt(0)")
a("s_barrier")
a("s_cmp_eq_u32 s10, 0")
a("s_cbranch_scc1 L_chain")
HOLD = int(os.environ.get("HOLD", "0"))
if HOLD:
    a("s_barrier")
prefetch_all(not EARLY)
a("s_branch L_chain_done")
a.label("L_chain")
FR = WQR[5]
SUM = ACC
a("s_lshl_b32 s15, s11, 2")
a(f"v_mov_b32 v{FR+26}, s15")
a("s_lshl_b32 s15, s12, 2")
a("s_add_u32 s15, s15, 128")
a(f"v_mov_b32 v{FR+27}, s15")
a(f"v_lshlrev_b32 v{TT1}, 4, v1")
a("v_cmp_gt_u32 vcc, 48, v1")
a("s_and_saveexec_b64 s[92:93], vcc")
for blk in range(4):
    for r in range(5):
        a(f"ds_read_b128 v[{FR+4*r}:{FR+4*r+3}], v{TT1} offset:{L_RED + (blk*5+r)*768}")
    a("s_waitcnt lgkmcnt(0)")
    for r in range(5):
        for e in range(4):
            if blk == 0 and r == 0:
                a(f"v_mov_b32 v{SUM+e}, v{FR+e}")
            else:
                a(f"v_add_f32 v{SUM+e}, v{SUM+e}, v{FR+4*r+e}")
a("s_mov_b64 exec, -1")
a("v_cmp_le_u32 vcc, 48, v1")
a("s_and_saveexec_b64 s[92:93], vcc")
a("v_cmp_gt_u32 vcc, 60, v1")
a("s_and_b64 exec, exec, vcc")
for blk in range(16):
    for r in range(5):
        a(f"ds_read_b128 v[{FR+4*r}:{FR+4*r+3}], v{TT1} offset:{L_RED + 15360 - 768 + (blk*5+r)*192}")
    a("s_waitcnt lgkmcnt(0)")
    for r in range(5):
        for e in range(4):
            if blk == 0 and r == 0:
                a(f"v_mov_b32 v{SUM+e}, v{FR+e}")
            else:
                a(f"v_add_f32 v{SUM+e}, v{SUM+e}, v{FR+4*r+e}")
a("s_mov_b64 exec, -1")
a("v_cmp_gt_u32 vcc, 60, v1")
a("s_and_saveexec_b64 s[92:93], vcc")
a("s_lshl_b32 s14, s2, 10")
a(f"s_add_u32 s14, s14, {WS_QP}")
a(f"buffer_store_dwordx4 v[{SUM}:{SUM+3}], v{TT1}, s[24:27], s14 offen sc1")
a("s_mov_b64 exec, -1")
for e in range(4):
    a(f"v_mov_b32 v{FR+16+e}, -1")
a("s_lshl_b32 s14, s2, 10")
a(f"s_add_u32 s14, s14, {WS_PART}")
a("v_cmp_gt_u32 vcc, 49, v1")
a("s_and_saveexec_b64 s[92:93], vcc")
a(f"buffer_store_dwordx4 v[{FR+16}:{FR+19}], v{TT1}, s[24:27], s14 offen sc1")
a("s_mov_b64 exec, -1")
a("s_mul_i32 s14, s12, 20480")
a("s_mul_i32 s15, s11, 640")
a("s_add_u32 s14, s14, s15")
a(f"s_add_u32 s14, s14, {WS_OUTP}")
a("v_cmp_gt_u32 vcc, 40, v1")
a("s_and_saveexec_b64 s[92:93], vcc")
a(f"buffer_store_dwordx4 v[{FR+16}:{FR+19}], v{TT1}, s[24:27], s14 offen sc1")
a("s_mov_b64 exec, -1")
a(f"v_subrev_u32 v{FR+20}, 48, v1")
a(f"v_lshlrev_b32 v{FR+20}, 3, v{FR+20}")
a(f"buffer_load_dwordx2 v[{FR+22}:{FR+23}], v{FR+20}, s[48:51], s95 offen")
a("s_mov_b32 s94, 0")
a.label("L_flag")
a(f"buffer_load_dword v{FR+24}, v{FR+26}, s[60:63], 0 offen sc1")
a(f"buffer_load_dword v{FR+25}, v{FR+27}, s[60:63], 0 offen sc1")
a("s_waitcnt vmcnt(0)")
a(f"v_min_u32 v{FR+24}, v{FR+24}, v{FR+25}")
a("s_nop 0")
a(f"v_readfirstlane_b32 s15, v{FR+24}")
a("s_nop 3")
a("s_cmp_lg_u32 s15, 0")
a("s_cbranch_scc1 L_flag_ok")
a("s_sleep 8")
a("s_add_u32 s94, s94, 1")
a("s_cmp_lt_u32 s94, 0x100000")
a("s_cbranch_scc1 L_flag")
a.label("L_flag_ok")
a(f"v_mov_b32 v{FR+24}, 1")
a("v_cmp_eq_u32 vcc, 0, v1")
a("s_and_saveexec_b64 s[92:93], vcc")
a(f"buffer_atomic_add v{FR+24}, off, s[24:27], s96 offset:64")
a("s_mov_b64 exec, -1")
a("s_mov_b32 s94, 0")
a.label("L_qpoll")
a(f"buffer_load_dword v{FR+24}, off, s[24:27], s96 offset:64 sc1")
a("s_waitcnt vmcnt(0)")
a(f"v_readfirstlane_b32 s15, v{FR+24}")
a("s_nop 3")
a(f"s_cmp_ge_u32 s15, {NCHUNK}")
a("s_cbranch_scc1 L_qpoll_done")
a("s_sleep 2")
a("s_add_u32 s94, s94, 1")
a("s_cmp_lt_u32 s94, 0x100000")
a("s_cbranch_scc1 L_qpoll")
a.label("L_qpoll_done")
G = VBUF[0]
a("v_cmp_gt_u32 vcc, 60, v1")
a("s_and_saveexec_b64 s[92:93], vcc")
a("s_lshl_b32 s14, s11, 13")
a(f"s_add_u32 s14, s14, {WS_QP}")
for c in range(NCHUNK):
    if c and c % 4 == 0:
        a("s_add_u32 s14, s14, 4096")
    a(f"buffer_load_dwordx4 v[{G+4*c}:{G+4*c+3}], v{TT1}, s[24:27], s14 offen offset:{1024*(c%4)} sc1")
if HOLD:
    a("s_barrier")
a("s_waitcnt vmcnt(0)")
for e in range(4):
    a(f"v_mov_b32 v{SUM+e}, v{G+e}")
    for c in range(1, NCHUNK):
        a(f"v_add_f32 v{SUM+e}, v{SUM+e}, v{G+4*c+e}")
a(f"v_cvt_pk_bf16_f32 v{FR}, v{SUM}, v{SUM+1}")
a(f"v_cvt_pk_bf16_f32 v{FR+1}, v{SUM+2}, v{SUM+3}")
a(f"v_lshlrev_b32 v{FR+2}, 3, v1")
a("v_cmp_gt_u32 vcc, 48, v1")
a("s_and_saveexec_b64 s[100:101], vcc")
a(f"ds_write_b64 v{FR+2}, v[{FR}:{FR+1}] offset:{L_Q}")
a("s_mov_b64 exec, s[100:101]")
a(f"v_lshlrev_b32 v{SUM}, 16, v{FR}")
a(f"v_and_b32 v{SUM+1}, 0xffff0000, v{FR}")
a(f"v_lshlrev_b32 v{SUM+2}, 16, v{FR+1}")
a(f"v_and_b32 v{SUM+3}, 0xffff0000, v{FR+1}")
a(f"v_lshlrev_b32 v{FR+4}, 16, v{FR+22}")
a(f"v_and_b32 v{FR+5}, 0xffff0000, v{FR+22}")
a(f"v_lshlrev_b32 v{FR+6}, 16, v{FR+23}")
a(f"v_and_b32 v{FR+7}, 0xffff0000, v{FR+23}")
for e in range(4):
    x = SUM + e
    t = FR + 8 + e
    a(f"v_add_f32 v{x}, v{x}, v{FR+4+e}")
    rbf(a, x)
    a(f"v_mul_f32 v{t}, v{x}, v{x}")
    a(f"v_mul_f32 v{t}, {f32(0.044715)}, v{t}")
    a(f"v_add_f32 v{t}, 1.0, v{t}")
    a(f"v_mul_f32 v{t}, v{t}, v{x}")
    a(f"v_mul_f32 v{t}, {f32(-2.0*0.7978845608028654*LOG2E)}, v{t}")
    a(f"v_exp_f32 v{t}, v{t}")
    a("s_nop 1")
    a(f"v_add_f32 v{t}, 1.0, v{t}")
    a(f"v_rcp_f32 v{t}, v{t}")
    a("s_nop 1")
    a(f"v_mul_f32 v{x}, v{x}, v{t}")
    rbf(a, x)
a("v_cmp_le_u32 vcc, 48, v1")
a("s_and_b64 exec, exec, vcc")
a(f"v_lshlrev_b32 v{FR+20}, 1, v{FR+20}")
a(f"ds_write_b128 v{FR+20}, v[{SUM}:{SUM+3}] offset:{L_H}")
a("s_mov_b64 exec, -1")
a("s_waitcnt lgkmcnt(0)")
prefetch_all()
a.label("L_chain_done")
a("s_barrier")
for j in range(6):
    a(f"ds_read_b128 v[{Q+4*j}:{Q+4*j+3}], v3 offset:{L_Q+64*j}")
for k in range(2):
    a(f"v_mov_b32 v{AT[k]}, 1")
a("v_cmp_eq_u32 vcc, 0, v1")
a("s_and_saveexec_b64 s[92:93], vcc")
a(f"buffer_atomic_add v{AT[1]}, off, s[24:27], s96 sc0")
a(f"buffer_atomic_add v{AT[0]}, off, s[24:27], s96 sc0")
a("s_or_b64 exec, exec, s[92:93]")
a("s_waitcnt lgkmcnt(0)")
stamp(2)
a("v_cmp_le_u32 vcc, 24, v1")
a("v_mov_b32 v5, 0")
a(f"v_mov_b32 v{T}, 4")
a("s_nop 1")
a(f"v_cndmask_b32 v5, v5, v{T}, vcc")
for j in range(8):
    a(f"v_add_u32 v{BP+j}, {8*j}, v5")
    a(f"v_mov_b32 v{ACC+j}, 0")
a(f"v_mov_b32 v{M}, 0xff800000")
a(f"v_mov_b32 v{L}, 0")
a(f"v_mul_u32_u24 v{T}, 205, v0")
a(f"v_lshrrev_b32 v{RG}, 11, v{T}")
a(f"v_mul_u32_u24 v{T}, 10, v{RG}")
a(f"v_sub_u32 v{C24}, v0, v{T}")
a(f"v_mul_u32_u24 v7, 1280, v{RG}")
a(f"v_lshlrev_b32 v{T}, 4, v{C24}")
a(f"v_add_u32 v7, v7, v{T}")
a(f"v_mov_b32 v{T}, 0x40000000")
a("v_cmp_gt_u32 vcc, 480, v0")
a("s_nop 1")
a(f"v_cndmask_b32 v7, v{T}, v7, vcc")
KLA, VLA = WQR[0], WQR[0] + 1
a("s_mul_i32 s14, s10, 12288")
a(f"s_add_u32 s14, s14, {L_T2}")
a(f"v_add_u32 v{KLA}, s14, v2")
a(f"v_add_u32 v{VLA}, s14, v{FLATV}")

def mfma(buf):
    for j in range(6):
        c = "0" if j == 0 else f"v[{D}:{D+3}]"
        a(f"v_mfma_f32_16x16x32_bf16 v[{D}:{D+3}], v[{Q+4*j}:{Q+4*j+3}], v[{KBUF[buf]+4*j}:{KBUF[buf]+4*j+3}], {c}")

def grab(k):
    a(f"v_mov_b32 v{AT[k]}, 1")
    a("v_cmp_eq_u32 vcc, 0, v1")
    a("s_and_saveexec_b64 s[92:93], vcc")
    a(f"buffer_atomic_add v{AT[k]}, off, s[24:27], s96 sc0")
    a("s_or_b64 exec, exec, s[92:93]")

def mid(buf, vwait):
    a("s_nop 8")
    a(f"v_cvt_pk_bf16_f32 v{T}, v{D}, v{D}")
    a(f"v_lshlrev_b32 v{T}, 16, v{T}")
    a(f"v_mul_f32 v{T}, {f32(192 ** -0.5)}, v{T}")
    rbf(a, T)
    a(f"v_mul_f32 v{T}, {f32(LOG2E)}, v{T}")
    a("s_nop 1")
    a(f"v_max_f32_dpp v{T+1}, v{T}, v{T} row_ror:8 row_mask:0xf bank_mask:0xf")
    a("s_nop 1")
    a(f"v_max_f32_dpp v{T+1}, v{T+1}, v{T+1} row_ror:4 row_mask:0xf bank_mask:0xf")
    a("s_nop 1")
    a(f"v_max_f32_dpp v{T+1}, v{T+1}, v{T+1} row_ror:2 row_mask:0xf bank_mask:0xf")
    a("s_nop 1")
    a(f"v_max_f32_dpp v{T+1}, v{T+1}, v{T+1} row_ror:1 row_mask:0xf bank_mask:0xf")
    a(f"v_max_f32 v{T+1}, v{T+1}, v{M}")
    a(f"v_sub_f32 v{T+2}, v{M}, v{T+1}")
    a(f"v_sub_f32 v{T+3}, v{T}, v{T+1}")
    a(f"v_exp_f32 v{T+2}, v{T+2}")
    a(f"v_exp_f32 v{T+3}, v{T+3}")
    a(f"v_mov_b32 v{M}, v{T+1}")
    a(f"v_fma_f32 v{L}, v{L}, v{T+2}, v{T+3}")
    for j in range(8):
        a(f"ds_bpermute_b32 v{P+j}, v{BP+j}, v{T+3}")
    for j in range(8):
        a(f"v_mul_f32 v{ACC+j}, v{ACC+j}, v{T+2}")
    a("s_waitcnt lgkmcnt(0)")
    for j in range(8):
        w = vwait(j)
        if w:
            a(w)
        for r in range(4):
            wv = VBUF[buf] + 4 * j + r
            a(f"v_lshlrev_b32 v{T+4}, 16, v{wv}")
            a(f"v_and_b32 v{T+5}, 0xffff0000, v{wv}")
            a(f"v_fmac_f32 v{ACC+2*r}, v{T+4}, v{P+j}")
            a(f"v_fmac_f32 v{ACC+2*r+1}, v{T+5}, v{P+j}")

_idxn = [0]
def idx_to_off(k, sreg):
    n = _idxn[0]; _idxn[0] += 1
    a(f"v_readfirstlane_b32 s{sreg}, v{AT[k]}")
    a("s_nop 3")
    a(f"s_cmp_ge_u32 s{sreg}, 0x1000")
    a(f"s_cbranch_scc1 L_idx{n}")
    a("s_waitcnt vmcnt(0)")
    a(f"v_readfirstlane_b32 s{sreg}, v{AT[k]}")
    a("s_nop 3")
    a.label(f"L_idx{n}")
    a(f"s_sub_u32 s{sreg}, s{sreg}, {0x1000 - NSTAT}")

a("s_waitcnt vmcnt(0)")
mfma(0)
EXPG = os.environ.get("EXPG", "0")
if EXPG == "1":
    a(f"s_add_u32 s91, s90, {128*16*384}")
    load_k(0, 91)
    mid(0, lambda j: None)
    load_v(0, 91)
    a("s_waitcnt vmcnt(0)")
else:
    for j in range(6):
        a(f"ds_read_b128 v[{KBUF[0]+4*j}:{KBUF[0]+4*j+3}], v{KLA} offset:{64*j}")
    mid(0, lambda j: None)
    for j in range(8):
        a(f"ds_read_b128 v[{VBUF[0]+4*j}:{VBUF[0]+4*j+3}], v{VLA} offset:{6144+768*j}")
mfma(1)
idx_to_off(1, 91)
a(f"s_mul_i32 s91, s91, {16*384}")
load_k(1, 91)
grab(1)
mid(1, lambda j: None)
load_v(1, 91)
a("s_waitcnt lgkmcnt(0)")
mfma(0)
idx_to_off(0, 91)
a(f"s_mul_i32 s91, s91, {16*384}")
load_k(0, 91)
grab(0)
mid(0, lambda j: None)
load_v(0, 91)
def tail_loads(buf):
    kb = KBUF[buf]
    a(f"s_mul_i32 s14, s11, {192*1280}")
    a("s_mul_i32 s15, s12, 160")
    a("s_add_u32 s14, s14, s15")
    for i in range(4):
        a(f"buffer_load_dwordx4 v[{kb+4*i}:{kb+4*i+3}], v7, s[40:43], s14 offen")
        a(f"s_add_u32 s14, s14, {48*1280}")
    a(f"s_mul_i32 s14, s11, {48*1280}")
    a("s_add_u32 s14, s14, s15")
    a(f"buffer_load_dwordx4 v[{kb+16}:{kb+19}], v7, s[44:47], s14 offen")

a.label("L_loop")
for buf in (1, 0):
    a("s_waitcnt vmcnt(22)")
    mfma(buf)
    idx_to_off(buf, 91)
    a(f"s_cmp_ge_u32 s91, {NT_HEAD}")
    a(f"s_cbranch_scc1 L_drain{buf}")
    a(f"s_mul_i32 s91, s91, {16*384}")
    load_k(buf, 91)
    grab(buf)
    mid(buf, lambda j: f"s_waitcnt vmcnt({20 + 7 - j})")
    load_v(buf, 91)
a("s_branch L_loop")
for buf in (1, 0):
    other = 1 - buf
    a.label(f"L_drain{buf}")
    tail_loads(buf)
    mid(buf, lambda j: f"s_waitcnt vmcnt({19 + 7 - j})")
    a("s_waitcnt vmcnt(13)")
    mfma(other)
    mid(other, lambda j: f"s_waitcnt vmcnt({5 + 7 - j})")
    a(f"s_mov_b32 s94, {KBUF[buf]}")
    a(f"s_branch L_fin{buf}")
stamp_done = False

def finish(buf):
    KB = KBUF[buf]
    R = VBUF[0]
    sfx = str(buf)
    if buf == 1:
        stamp(3)
    a("s_nop 1")
    for sh in (8, 4, 2, 1):
        a(f"v_add_f32_dpp v{L}, v{L}, v{L} row_ror:{sh} row_mask:0xf bank_mask:0xf")
        a("s_nop 1")
    a("s_lshl_b32 s14, s10, 2")
    a(f"v_mov_b32 v{T}, s14")
    a(f"ds_write_b32 v{T}, v{M} offset:{L_WM}")
    a(f"ds_write_b32 v{T}, v{L} offset:{L_WM+64}")
    a("s_mul_i32 s14, s10, 1536")
    a(f"v_lshlrev_b32 v{T}, 5, v1")
    a(f"v_add_u32 v{T}, s14, v{T}")
    a("v_cmp_gt_u32 vcc, 48, v1")
    a("s_and_saveexec_b64 s[92:93], vcc")
    a(f"ds_write_b128 v{T}, v[{ACC}:{ACC+3}] offset:{L_ACC}")
    a(f"ds_write_b128 v{T}, v[{ACC+4}:{ACC+7}] offset:{L_ACC+16}")
    a("s_or_b64 exec, exec, s[92:93]")
    a("s_waitcnt vmcnt(0)")
    for i in range(20):
        a(f"v_mov_b32 v{WQR[1]+i}, v{KB+i}")
    if buf == 0:
        a("s_branch L_common")

a.label("L_fin0")
finish(0)
a.label("L_fin1")
finish(1)
a.label("L_common")
KB = WQR[1]
R = VBUF[0]
a("s_waitcnt lgkmcnt(0)")
a("s_barrier")
a("v_cmp_gt_u32 vcc, 192, v0")
a("s_and_saveexec_b64 s[92:93], vcc")
a("s_cbranch_execz L_rec_done")
a(f"v_mov_b32 v{T}, 0")
a(f"v_lshlrev_b32 v{T+1}, 2, v0")
for w in range(NW):
    a(f"ds_read_b32 v{R+w}, v{T} offset:{L_WM+4*w}")
    a(f"ds_read_b32 v{R+8+w}, v{T} offset:{L_WM+64+4*w}")
    a(f"ds_read_b32 v{R+16+2*w}, v{T+1} offset:{L_ACC+1536*w}")
    a(f"ds_read_b32 v{R+17+2*w}, v{T+1} offset:{L_ACC+1536*w+768}")
a("s_waitcnt lgkmcnt(0)")
a(f"v_mov_b32 v{T+2}, v{R}")
for w in range(1, NW):
    a(f"v_max_f32 v{T+2}, v{T+2}, v{R+w}")
a(f"v_mov_b32 v{T+3}, 0")
a(f"v_mov_b32 v{T+4}, 0")
for w in range(NW):
    a(f"v_sub_f32 v{T+5}, v{R+w}, v{T+2}")
    a(f"v_exp_f32 v{T+5}, v{T+5}")
    a(f"v_add_f32 v{P}, v{R+16+2*w}, v{R+17+2*w}")
    a(f"v_fmac_f32 v{T+3}, v{T+5}, v{R+8+w}")
    a(f"v_fmac_f32 v{T+4}, v{T+5}, v{P}")
a("s_lshl_b32 s14, s2, 10")
a(f"s_add_u32 s14, s14, {WS_PART}")
a(f"buffer_store_dword v{T+4}, v{T+1}, s[24:27], s14 offen sc1")
a("v_cmp_eq_u32 vcc, 0, v0")
a("s_and_saveexec_b64 s[100:101], vcc")
a(f"buffer_store_dword v{T+2}, v{T+1}, s[24:27], s14 offen offset:768 sc1")
a(f"buffer_store_dword v{T+3}, v{T+1}, s[24:27], s14 offen offset:772 sc1")
a("s_mov_b64 exec, s[100:101]")
stamp(4)
a("s_lshl_b32 s15, s11, 13")
a(f"s_add_u32 s15, s15, {WS_PART}")
a(f"v_mov_b32 v{T}, 0")
a("s_mov_b32 s94, 0")
a.label("L_poll")
a("s_mov_b32 s14, s15")
for c in range(NCHUNK):
    if c and c % 4 == 0:
        a("s_add_u32 s14, s14, 4096")
    a(f"buffer_load_dword v{R+c}, v{T+1}, s[24:27], s14 offen offset:{1024*(c%4)} sc1")
    a(f"buffer_load_dwordx2 v[{R+8+2*c}:{R+9+2*c}], v{T}, s[24:27], s14 offen offset:{1024*(c%4)+768} sc1")
a("s_waitcnt vmcnt(0)")
a(f"v_and_b32 v{T+2}, v{R}, v{R+1}")
for i in range(2, 24):
    a(f"v_max_u32 v{T+2}, v{T+2}, v{R+i}") if False else None
a(f"v_max_u32 v{T+2}, v{R}, v{R+1}")
for i in range(2, 24):
    a(f"v_max_u32 v{T+2}, v{T+2}, v{R+i}")
a(f"v_cmp_eq_u32 vcc, -1, v{T+2}")
a("s_cbranch_vccz L_poll_done")
a("s_sleep 1")
a("s_add_u32 s94, s94, 1")
a("s_cmp_lt_u32 s94, 0x100000")
a("s_cbranch_scc1 L_poll")
a.label("L_poll_done")
stamp(5)
a(f"v_mov_b32 v{T+2}, v{R+8}")
for c in range(1, NCHUNK):
    a(f"v_max_f32 v{T+2}, v{T+2}, v{R+8+2*c}")
a(f"v_mov_b32 v{T+3}, 0")
a(f"v_mov_b32 v{T+4}, 0")
for c in range(NCHUNK):
    a(f"v_sub_f32 v{T+5}, v{R+8+2*c}, v{T+2}")
    a(f"v_exp_f32 v{T+5}, v{T+5}")
    a("s_nop 0")
    a(f"v_fmac_f32 v{T+3}, v{T+5}, v{R+9+2*c}")
    a(f"v_fmac_f32 v{T+4}, v{T+5}, v{R+c}")
a(f"v_rcp_f32 v{T+5}, v{T+3}")
a("s_nop 1")
a(f"v_fma_f32 v{T+2}, -v{T+3}, v{T+5}, 1.0")
a(f"v_fmac_f32 v{T+5}, v{T+2}, v{T+5}")
a(f"v_mul_f32 v{T+4}, v{T+4}, v{T+5}")
rbf(a, T + 4)
a(f"ds_write_b32 v{T+1}, v{T+4} offset:{L_O}")
a.label("L_rec_done")
a("s_mov_b64 exec, -1")
a("s_waitcnt lgkmcnt(0)")
a("s_barrier")
a(f"v_lshlrev_b32 v5, 2, v{RG}")
for i in range(4):
    a(f"ds_read_b32 v{R+i}, v5 offset:{L_O + 48*4*i}")
a(f"ds_read_b32 v{R+4}, v5 offset:{L_H}")
for r in range(8):
    a(f"v_mov_b32 v{ACC+r}, 0")
a("s_waitcnt lgkmcnt(0)")
for i in range(4):
    for r in range(4):
        a(f"v_lshlrev_b32 v{T+4}, 16, v{KB+4*i+r}")
        a(f"v_and_b32 v{T+5}, 0xffff0000, v{KB+4*i+r}")
        a(f"v_fmac_f32 v{ACC+2*r}, v{T+4}, v{R+i}")
        a(f"v_fmac_f32 v{ACC+2*r+1}, v{T+5}, v{R+i}")
for r in range(4):
    a(f"v_lshlrev_b32 v{T+4}, 16, v{KB+16+r}")
    a(f"v_and_b32 v{T+5}, 0xffff0000, v{KB+16+r}")
    a(f"v_mul_f32 v{P+2*r}, v{T+4}, v{R+4}")
    a(f"v_mul_f32 v{P+2*r+1}, v{T+5}, v{R+4}")
a(f"v_mul_u32_u24 v5, 640, v{RG}")
a(f"v_lshlrev_b32 v{T}, 5, v{C24}")
a(f"v_add_u32 v5, v5, v{T}")
a("v_cmp_gt_u32 vcc, 480, v0")
a("s_and_saveexec_b64 s[92:93], vcc")
a(f"ds_write_b128 v5, v[{ACC}:{ACC+3}] offset:{L_RED}")
a(f"ds_write_b128 v5, v[{ACC+4}:{ACC+7}] offset:{L_RED+16}")
a(f"ds_write_b128 v5, v[{P}:{P+3}] offset:{L_RED+320}")
a(f"ds_write_b128 v5, v[{P+4}:{P+7}] offset:{L_RED+336}")
a("s_or_b64 exec, exec, s[92:93]")
a("s_waitcnt lgkmcnt(0)")
a("s_barrier")
a("v_cmp_gt_u32 vcc, 160, v0")
a("s_and_saveexec_b64 s[92:93], vcc")
a("s_cbranch_execz L_outp_done")
a("v_lshlrev_b32 v5, 2, v0")
for blk in range(2):
    for r in range(24):
        a(f"ds_read_b32 v{R+r}, v5 offset:{L_RED + (blk*24+r)*640}")
    a("s_waitcnt lgkmcnt(0)")
    for r in range(24):
        if blk == 0 and r == 0:
            a(f"v_mov_b32 v{T}, v{R}")
        else:
            a(f"v_add_f32 v{T}, v{T}, v{R+r}")
a("s_mul_i32 s14, s12, 20480")
a("s_mul_i32 s15, s11, 640")
a("s_add_u32 s14, s14, s15")
a(f"s_add_u32 s14, s14, {WS_OUTP}")
a(f"buffer_store_dword v{T}, v5, s[24:27], s14 offen sc1")
a.label("L_outp_done")
a("s_mov_b64 exec, -1")
stamp(6)
a("s_cmp_lg_u32 s11, 0")
a("s_cbranch_scc1 L_done")
a("v_cmp_gt_u32 vcc, 160, v0")
a("s_and_saveexec_b64 s[92:93], vcc")
a("v_lshlrev_b32 v5, 2, v0")
a("s_mul_i32 s15, s12, 20480")
a(f"s_add_u32 s15, s15, {WS_OUTP}")
F = KBUF[0]
a(f"v_subrev_u32 v{T+1}, 80, v0")
a("v_cmp_gt_u32 vcc, 80, v0")
a("s_nop 1")
a(f"v_cndmask_b32 v{T+1}, v{T+1}, v0, vcc")
a(f"v_lshlrev_b32 v{T+1}, 1, v{T+1}")
a("s_mul_i32 s14, s12, 160")
a(f"buffer_load_ushort v{P}, v{T+1}, s[36:39], s14 offen")
a(f"buffer_load_ushort v{P+1}, v{T+1}, s[52:55], s14 offen")
a("s_cbranch_execz L_fpoll_done")
a("s_mov_b32 s94, 0")
a.label("L_fpoll")
a("s_mov_b32 s14, s15")
for hh in range(32):
    if hh and hh % 4 == 0:
        a("s_add_u32 s14, s14, 2560")
    a(f"buffer_load_dword v{F+hh}, v5, s[24:27], s14 offen offset:{640*(hh%4)} sc1")
a("s_waitcnt vmcnt(0)")
a(f"v_max_u32 v{T+2}, v{F}, v{F+1}")
for hh in range(2, 32):
    a(f"v_max_u32 v{T+2}, v{T+2}, v{F+hh}")
a(f"v_cmp_eq_u32 vcc, -1, v{T+2}")
a("s_cbranch_vccz L_fpoll_done")
a("s_sleep 1")
a("s_add_u32 s94, s94, 1")
a("s_cmp_lt_u32 s94, 0x100000")
a("s_cbranch_scc1 L_fpoll")
a.label("L_fpoll_done")
a("s_mul_i32 s15, s12, 160")
a("s_waitcnt vmcnt(0)")
a(f"v_mov_b32 v{T+2}, v{P}")
a(f"v_mov_b32 v{T+3}, v{P+1}")
a(f"v_mov_b32 v{T}, v{F}")
for hh in range(1, 32):
    a(f"v_add_f32 v{T}, v{T}, v{F+hh}")
rbf(a, T)
a(f"v_lshlrev_b32 v{T+3}, 16, v{T+3}")
a(f"v_add_f32 v{T+4}, v{T}, v{T+3}")
rbf(a, T + 4)
a(f"v_mul_f32 v{T+5}, {f32(-LOG2E)}, v{T+4}")
a(f"v_exp_f32 v{T+5}, v{T+5}")
a("s_nop 1")
a(f"v_add_f32 v{T+5}, 1.0, v{T+5}")
a(f"v_rcp_f32 v{T+5}, v{T+5}")
a("s_nop 1")
a(f"v_mul_f32 v{T+4}, v{T+4}, v{T+5}")
rbf(a, T + 4)
a(f"ds_write_b32 v5, v{T+4} offset:{L_RED}")
a("s_or_b64 exec, exec, s[92:93]")
a("s_waitcnt lgkmcnt(0)")
a("s_barrier")
a("v_cmp_gt_u32 vcc, 80, v0")
a("s_and_saveexec_b64 s[92:93], vcc")
a("s_cbranch_execz L_done")
a(f"ds_read_b32 v{T+4}, v5 offset:{L_RED+320}")
a("s_waitcnt lgkmcnt(0)")
a(f"v_mul_f32 v{T}, v{T}, v{T+4}")
rbf(a, T)
a(f"v_lshlrev_b32 v{T+2}, 16, v{T+2}")
a(f"v_add_f32 v{T}, v{T}, v{T+2}")
a(f"v_cvt_pk_bf16_f32 v{T}, v{T}, v{T}")
a(f"buffer_store_short v{T}, v{T+1}, s[56:59], s15 offen")
a("s_mov_b64 exec, -1")
stamp(7)
a.label("L_done")
a("s_endpgm")

out += a.text()
nv = 254 if DIAG else NV
out += f""".section .rodata,"a"
.p2align 6
.amdhsa_kernel {KN}
  .amdhsa_next_free_vgpr {nv}
  .amdhsa_next_free_sgpr 102
  .amdhsa_accum_offset {(nv+3)//4*4}
  .amdhsa_group_segment_fixed_size 0
  .amdhsa_kernarg_size 104
  .amdhsa_user_sgpr_count 2
  .amdhsa_user_sgpr_kernarg_segment_ptr 1
  .amdhsa_system_sgpr_workgroup_id_x 1
.end_amdhsa_kernel
"""
open(OUT, "w").write(out)
print("wrote", OUT, len(out), "vgpr", nv, "lds", LDS_BYTES)
```

```python
import struct, sys, os, re, math

NAME = "recurrent_scan__gqa_block_cached__mixer_channel_mlp__decode"
OUT = os.environ.get("OUT", "cdna_kernels/%s.s" % NAME)
DIAG = os.environ.get("DIAG", "0") == "1"
KVF = os.environ.get("KVF", "nt")

NW = 8
NCHUNK = 8
SK = 8192
NT_HEAD = SK // 16
NSTAT = 3 * NW * NCHUNK

WS_CTR = 0
WS_CG = 32 * 256
WS_PART = 65536
WS_OUTP = WS_PART + 32 * NCHUNK * 1024
WS_QP = WS_OUTP + 8 * 32 * 640
WS_SIZE = 402653184

KA_X, KA_K, KA_V, KA_WQ, KA_WO, KA_BX, KA_W1, KA_B1, KA_W2, KA_B2, KA_OUT, KA_DBG, KA_WS = [8 * i for i in range(13)]

L_XN = 0
L_Y = 2560
L_RED = 5120
L_ACC = 5120
L_Q = 35840
L_H = 36224
L_WM = 36416
L_O = 36544
L_FLAG = 37312
L_T2 = 37376
LDS_BYTES = L_T2 + NW * 12288

def f32(x):
    return "0x%08x" % struct.unpack("<I", struct.pack("<f", x))[0]
LOG2E = 1.4426950408889634
for t in range(480):
    assert (t * 171) >> 12 == t // 24 and (t * 171) >> 10 == t // 6 and (t * 205) >> 11 == t // 10

class A:
    def __init__(self):
        self.l = []
    def __call__(self, s):
        for line in s.split("\n"):
            line = line.strip()
            m = re.search(r"offset:(\d+)", line)
            if m and line.startswith("buffer_"):
                assert int(m.group(1)) <= 4095, line
            if m and line.startswith("ds_"):
                assert int(m.group(1)) <= 65535, line
            self.l.append("    " + line)
    def label(self, s):
        self.l.append(s + ":")
    def text(self):
        return "\n".join(self.l) + "\n"

def srd(a, d, b, nbytes, add=None):
    if add is None:
        a(f"s_mov_b32 s{d}, s{b}")
        a(f"s_and_b32 s{d+1}, s{b+1}, 0xffff")
    else:
        a(f"s_add_u32 s{d}, s{b}, {add}")
        a(f"s_addc_u32 s{d+1}, s{b+1}, 0")
        a(f"s_and_b32 s{d+1}, s{d+1}, 0xffff")
    a(f"s_mov_b32 s{d+2}, {nbytes}")
    a(f"s_mov_b32 s{d+3}, 0x00020000")

def rbf(a, v):
    a(f"v_cvt_pk_bf16_f32 v{v}, v{v}, v{v}")
    a(f"v_lshlrev_b32 v{v}, 16, v{v}")

def wave_sum(a, v, s):
    a("s_nop 1")
    for sh in (1, 2, 4, 8):
        a(f"v_add_f32_dpp v{v}, v{v}, v{v} row_shr:{sh} row_mask:0xf bank_mask:0xf bound_ctrl:0")
        a("s_nop 1")
    a(f"v_add_f32_dpp v{v}, v{v}, v{v} row_bcast:15 row_mask:0xa bank_mask:0xf")
    a("s_nop 1")
    a(f"v_add_f32_dpp v{v}, v{v}, v{v} row_bcast:31 row_mask:0xc bank_mask:0xf")
    a("s_nop 1")
    a(f"v_readlane_b32 s{s}, v{v}, 63")
    a("s_nop 3")

def layernorm(a, e, t0, t1, t2, s):
    a(f"v_add_f32 v{t0}, v{e}, v{e+1}")
    for i in range(2, 10):
        a(f"v_add_f32 v{t0}, v{t0}, v{e+i}")
    wave_sum(a, t0, s)
    a(f"v_mov_b32 v{t1}, s{s}")
    a(f"v_mul_f32 v{t1}, {f32(1.0/640)}, v{t1}")
    a(f"v_mov_b32 v{t0}, 0")
    for i in range(10):
        a(f"v_sub_f32 v{t2}, v{e+i}, v{t1}")
        a(f"v_fmac_f32 v{t0}, v{t2}, v{t2}")
    wave_sum(a, t0, s)
    a(f"v_mov_b32 v{t0}, s{s}")
    a(f"v_mul_f32 v{t0}, {f32(1.0/640)}, v{t0}")
    rbf(a, t0)
    rbf(a, t1)
    a(f"v_add_f32 v{t0}, {f32(1e-5)}, v{t0}")
    rbf(a, t0)
    a(f"v_sqrt_f32 v{t0}, v{t0}")
    a("s_nop 1")
    rbf(a, t0)
    a(f"v_rcp_f32 v{t2}, v{t0}")
    a("s_nop 1")
    a(f"v_fma_f32 v{t0}, -v{t0}, v{t2}, 1.0")
    a(f"v_fmac_f32 v{t2}, v{t0}, v{t2}")
    for i in range(10):
        a(f"v_sub_f32 v{e+i}, v{e+i}, v{t1}")
        rbf(a, e + i)
        a(f"v_mul_f32 v{e+i}, v{e+i}, v{t2}")
        rbf(a, e + i)

def stamp(i):
    if not DIAG:
        return
    a(f"s_cmp_lg_u32 s10, 0")
    a(f"s_cbranch_scc1 L_st{i}")
    a("s_memrealtime s[4:5]")
    a("s_waitcnt lgkmcnt(0)")
    a("s_lshl_b32 s6, s2, 6")
    a(f"s_add_u32 s6, s6, {(1<<20) + 8*i}")
    a("v_mov_b32 v252, s4")
    a("v_mov_b32 v253, s5")
    a("s_mov_b64 s[4:5], exec")
    a("s_mov_b64 exec, 1")
    a("buffer_store_dwordx2 v[252:253], off, s[24:27], s6")
    a("s_mov_b64 exec, s[4:5]")
    a.label(f"L_st{i}")

a = A()
hdr = open("cdna_kernels/%s.s.ref" % NAME).read().split("\n")
comment = [l for l in hdr if l.startswith(";") and "@launch" not in l]
out = "\n".join(comment) + "\n"
out += f"; @launch grid=({32*NCHUNK},1,1) block=({64*NW},1,1) lds={LDS_BYTES}\n"
out += '.amdgcn_target "amdgcn-amd-amdhsa--gfx950"\n.text\n'
KN = NAME + "_kernel"
a(f".globl {KN}")
a(".p2align 8")
a(f".type {KN},@function")
a.label(KN)

Q = 8
KBUF = [32, 88]
VBUF = [56, 112]
ACC = 144
M, L = 152, 153
T = 154
P = 160
D = 168
BP = 172
RG, C24, HV, FLATV = 180, 181, 184, 185
AT = [182, 183]
W1V, RG6A, C6 = 186, 187, D + 3
WS0 = 188
NSLOT = 16
WQR = [WS0 + 4 * i for i in range(NSLOT)]
NV = WS0 + 4 * NSLOT
QA = ACC
XV = P
TT0, TT1 = T, T + 1

a(f"s_cmp_ge_u32 s2, {32*NCHUNK}")
a("s_cbranch_scc1 L_done")
a(f"s_load_dwordx4 s[64:67], s[0:1], {KA_X}")
a(f"s_load_dwordx4 s[68:71], s[0:1], {KA_V}")
a(f"s_load_dwordx2 s[72:73], s[0:1], {KA_WO}")
a(f"s_load_dwordx4 s[76:79], s[0:1], {KA_W1}")
a(f"s_load_dwordx4 s[80:83], s[0:1], {KA_W2}")
a(f"s_load_dwordx4 s[84:87], s[0:1], {KA_OUT}")
a(f"s_load_dwordx2 s[88:89], s[0:1], {KA_WS}")
a("v_lshrrev_b32 v1, 6, v0")
a("s_nop 0")
a("v_readfirstlane_b32 s10, v1")
a("v_and_b32 v1, 63, v0")
a("s_lshr_b32 s11, s2, 3")
a("s_and_b32 s12, s2, 7")
a("s_mul_i32 s13, s11, 3145728")
a("v_and_b32 v2, 15, v1")
a("v_mul_u32_u24 v2, 384, v2")
a("v_lshrrev_b32 v3, 4, v1")
a("v_lshlrev_b32 v3, 4, v3")
a("v_add_u32 v2, v2, v3")
a(f"v_lshlrev_b32 v{FLATV}, 4, v1")
a(f"v_add_u32 v{HV}, 4096, v{FLATV}")
a("v_mov_b32 v5, 0x40000000")
a("v_cmp_gt_u32 vcc, 48, v1")
a("s_nop 1")
a(f"v_cndmask_b32 v4, v5, v{FLATV}, vcc")
a("v_add_u32 v6, 3072, v4")
a(f"v_mul_u32_u24 v{TT0}, 171, v0")
a(f"v_lshrrev_b32 v{RG}, 12, v{TT0}")
a(f"v_mul_u32_u24 v{TT1}, 24, v{RG}")
a(f"v_sub_u32 v{C24}, v0, v{TT1}")
a(f"v_lshrrev_b32 v{TT0}, 10, v{TT0}")
a(f"v_mul_u32_u24 v{TT1}, 6, v{TT0}")
a(f"v_sub_u32 v{C6}, v0, v{TT1}")
a(f"v_mul_u32_u24 v{W1V}, 3072, v{TT0}")
a(f"v_lshlrev_b32 v{TT1}, 4, v{C6}")
a(f"v_add_u32 v{W1V}, v{W1V}, v{TT1}")
a(f"v_lshlrev_b32 v{RG6A}, 2, v{TT0}")
a("s_mov_b32 s14, 12288")
a(f"v_mul_lo_u32 v7, v{RG}, s14")
a(f"v_lshlrev_b32 v{TT1}, 4, v{C24}")
a(f"v_add_u32 v7, v7, v{TT1}")
a("v_mov_b32 v5, 0x40000000")
a("v_cmp_gt_u32 vcc, 480, v0")
a("s_nop 1")
a("v_cndmask_b32 v7, v5, v7, vcc")
a(f"v_cndmask_b32 v{W1V}, v5, v{W1V}, vcc")
a("s_lshl_b32 s90, s12, 3")
a("s_add_u32 s90, s90, s10")
a(f"s_mul_i32 s90, s90, {16*384}")
a("s_lshl_b32 s96, s11, 8")
a(f"s_add_u32 s96, s96, {WS_CTR}")
a("s_waitcnt lgkmcnt(0)")
srd(a, 36, 64, 1280)
srd(a, 16, 66, 3145728, add="s13")
srd(a, 20, 68, 3145728, add="s13")
srd(a, 28, 70, 640 * 12288)
srd(a, 32, 76, 640 * 3072)
srd(a, 24, 88, WS_SIZE)
srd(a, 60, 86, 256)
stamp(0)
XR = Q + 18
E = Q
a("v_lshlrev_b32 v5, 2, v1")
for i in range(5):
    a(f"buffer_load_dword v{XR+i}, v5, s[36:39], 0 offen offset:{256*i}")
a("s_cmp_lg_u32 s10, 0")
a("s_cbranch_scc1 L_init_done")
a(f"v_mov_b32 v{TT0}, 0")
a(f"v_lshlrev_b32 v{TT1}, 6, v1")
a("s_cmp_lg_u32 s12, 0")
a("s_cbranch_scc1 L_init_cg")
a("v_cmp_eq_u32 vcc, 0, v1")
a(f"v_mov_b32 v{TT0+3}, 0x1000")
a("s_nop 0")
a(f"v_cndmask_b32 v{TT0+3}, v{TT0}, v{TT0+3}, vcc")
a("v_cmp_gt_u32 vcc, 3, v1")
a("s_and_saveexec_b64 s[92:93], vcc")
a(f"buffer_store_dword v{TT0+3}, v{TT1}, s[24:27], s96 offen sc1")
a("s_mov_b64 exec, -1")
a("s_waitcnt vmcnt(0)")
a("s_lshl_b32 s14, s11, 2")
a(f"v_mov_b32 v{TT1}, s14")
a(f"v_mov_b32 v{TT0+2}, 1")
a("v_cmp_eq_u32 vcc, 0, v1")
a("s_and_saveexec_b64 s[92:93], vcc")
a(f"buffer_atomic_add v{TT0+2}, v{TT1}, s[60:63], 0 offen")
a("s_mov_b64 exec, -1")
a.label("L_init_cg")
a("s_cmp_lg_u32 s11, 0")
a("s_cbranch_scc1 L_init_done")
a("s_lshl_b32 s14, s12, 8")
a(f"s_add_u32 s14, s14, {WS_CG}")
a("v_cmp_eq_u32 vcc, 0, v1")
a("s_and_saveexec_b64 s[92:93], vcc")
a(f"buffer_store_dword v{TT0}, off, s[24:27], s14 sc1")
a("s_waitcnt vmcnt(0)")
a("s_lshl_b32 s14, s12, 2")
a("s_add_u32 s14, s14, 128")
a(f"v_mov_b32 v{TT1}, s14")
a(f"v_mov_b32 v{TT0+2}, 1")
a(f"buffer_atomic_add v{TT0+2}, v{TT1}, s[60:63], 0 offen")
a("s_mov_b64 exec, -1")
a.label("L_init_done")
a("s_mul_i32 s14, s11, 384")
a(f"s_mul_i32 s15, s12, {80*12288}")
a("s_add_u32 s14, s14, s15")
a("s_mul_i32 s95, s11, 96")
a(f"s_mul_i32 s15, s12, {80*3072}")
a("s_add_u32 s15, s95, s15")
for i in range(4):
    if i:
        a(f"s_add_u32 s14, s14, {20*12288}")
    a(f"buffer_load_dwordx4 v[{WQR[i]}:{WQR[i]+3}], v7, s[28:31], s14 offen")
a(f"buffer_load_dwordx4 v[{WQR[4]}:{WQR[4]+3}], v{W1V}, s[32:35], s15 offen")
def k_ins(buf, soff):
    if os.environ.get("FLATK") == "1":
        return [f"buffer_load_dwordx4 v[{KBUF[buf]+4*j}:{KBUF[buf]+4*j+3}], v{FLATV if j < 4 else HV}, s[16:19], s{soff} offen offset:{1024*(j%4)} nt" for j in range(6)]
    return [f"buffer_load_dwordx4 v[{KBUF[buf]+4*j}:{KBUF[buf]+4*j+3}], v2, s[16:19], s{soff} offen offset:{64*j} {KVF}" for j in range(6)]
def v_ins(buf, soff):
    return [f"buffer_load_dwordx4 v[{VBUF[buf]+4*j}:{VBUF[buf]+4*j+3}], v{4 if j < 4 else 6}, s[20:23], s{soff} offen offset:{768*(j%4)} {KVF}" for j in range(8)]
def load_k(buf, soff):
    for l in k_ins(buf, soff):
        a(l)
def load_v(buf, soff):
    for l in v_ins(buf, soff):
        a(l)
a(f"s_add_u32 s91, s90, {64*16*384}")
a(f"s_add_u32 s99, s90, {128*16*384}")
a("s_mul_i32 s94, s10, 12288")
a(f"s_add_u32 s98, s94, {L_T2}")
EARLY = int(os.environ.get("EARLY", "0"))
def prefetch_all(first=True):
    if first:
        load_k(0, 90)
        load_v(0, 90)
    load_k(1, 91)
    load_v(1, 91)
    for half, sr in ((0, 16), (1, 20)):
        for grp in range(2):
            a(f"s_add_u32 s94, s98, {half*6144 + grp*3072}")
            a("s_mov_b32 m0, s94")
            a(f"s_add_u32 s94, s99, {grp*3072}")
            for j in range(3):
                a(f"buffer_load_dwordx4 v{FLATV}, s[{sr}:{sr+3}], s94 offen offset:{1024*j} {KVF} lds")
srd(a, 40, 72, 6144 * 1280)
srd(a, 48, 78, 3072)
srd(a, 44, 80, 1536 * 1280)
srd(a, 52, 82, 1280)
srd(a, 56, 84, 1280)
if EARLY:
    a("s_cmp_eq_u32 s10, 0")
    a("s_cbranch_scc1 L_noearly")
    load_k(0, 90)
    load_v(0, 90)
    a("s_waitcnt vmcnt(19)")
    a("s_branch L_early_done")
    a.label("L_noearly")
    a("s_waitcnt vmcnt(5)")
    a.label("L_early_done")
else:
    a("s_waitcnt vmcnt(5)")
for i in range(5):
    a(f"v_lshlrev_b32 v{E+2*i}, 16, v{XR+i}")
    a(f"v_and_b32 v{E+2*i+1}, 0xffff0000, v{XR+i}")
t0, t1, t2 = Q + 12, Q + 13, Q + 14
layernorm(a, E, t0, t1, t2, 15)
a("v_lshlrev_b32 v5, 3, v1")
for i in range(5):
    a(f"ds_write_b64 v5, v[{E+2*i}:{E+2*i+1}] offset:{L_XN+512*i}")
layernorm(a, E, t0, t1, t2, 15)
for i in range(5):
    a(f"ds_write_b64 v5, v[{E+2*i}:{E+2*i+1}] offset:{L_Y+512*i}")
a("s_waitcnt lgkmcnt(0)")
a("s_barrier")
stamp(1)
for r in range(8):
    a(f"v_mov_b32 v{QA+r}, 0")
a("s_mul_i32 s15, s12, 320")
a(f"v_lshlrev_b32 v5, 2, v{RG}")
a("v_add_u32 v5, s15, v5")
a(f"v_add_u32 v{TT0}, s15, v{RG6A}")
XQ = P
for i in range(4):
    a(f"ds_read_b32 v{XQ+i}, v5 offset:{L_XN + i*80}")
a(f"ds_read_b32 v{XQ+4}, v{TT0} offset:{L_Y}")
a(f"s_waitcnt vmcnt({14 if EARLY else 0}) lgkmcnt(0)")
if EARLY:
    a("s_cmp_lg_u32 s10, 0")
    a("s_cbranch_scc1 L_e2")
    a("s_waitcnt vmcnt(0)")
    a.label("L_e2")
for i in range(4):
    reg = WQR[i]
    for r in range(4):
        a(f"v_lshlrev_b32 v{TT0}, 16, v{reg+r}")
        a(f"v_and_b32 v{TT1}, 0xffff0000, v{reg+r}")
        a(f"v_fmac_f32 v{QA+2*r}, v{TT0}, v{XQ+i}")
        a(f"v_fmac_f32 v{QA+2*r+1}, v{TT1}, v{XQ+i}")
a(f"v_mul_u32_u24 v{TT0}, 768, v{RG}")
a(f"v_lshlrev_b32 v{TT1}, 5, v{C24}")
a(f"v_add_u32 v{TT0}, v{TT0}, v{TT1}")
a("v_cmp_gt_u32 vcc, 480, v0")
a("s_and_saveexec_b64 s[92:93], vcc")
a(f"ds_write_b128 v{TT0}, v[{QA}:{QA+3}] offset:{L_RED}")
a(f"ds_write_b128 v{TT0}, v[{QA+4}:{QA+7}] offset:{L_RED+16}")
a("s_or_b64 exec, exec, s[92:93]")
reg = WQR[4]
for r in range(4):
    a(f"v_lshlrev_b32 v{TT0}, 16, v{reg+r}")
    a(f"v_and_b32 v{TT1}, 0xffff0000, v{reg+r}")
    a(f"v_mul_f32 v{QA+2*r}, v{TT0}, v{XQ+4}")
    a(f"v_mul_f32 v{QA+2*r+1}, v{TT1}, v{XQ+4}")
a(f"v_mul_u32_u24 v{TT0}, 48, v{RG6A}")
a(f"v_lshlrev_b32 v{TT1}, 5, v{C6}")
a(f"v_add_u32 v{TT0}, v{TT0}, v{TT1}")
a("v_cmp_gt_u32 vcc, 480, v0")
a("s_and_saveexec_b64 s[92:93], vcc")
a(f"ds_write_b128 v{TT0}, v[{QA}:{QA+3}] offset:{L_RED+15360}")
a(f"ds_write_b128 v{TT0}, v[{QA+4}:{QA+7}] offset:{L_RED+15360+16}")
a("s_or_b64 exec, exec, s[92:93]")
a("s_waitcnt lgkmcnt(0)")
a("s_barrier")
a("s_cmp_eq_u32 s10, 0")
a("s_cbranch_scc1 L_chain")
HOLD = int(os.environ.get("HOLD", "0"))
if HOLD:
    a("s_barrier")
prefetch_all(not EARLY)
a("s_branch L_chain_done")
a.label("L_chain")
FR = WQR[5]
SUM = ACC
a("s_lshl_b32 s15, s11, 2")
a(f"v_mov_b32 v{FR+26}, s15")
a("s_lshl_b32 s15, s12, 2")
a("s_add_u32 s15, s15, 128")
a(f"v_mov_b32 v{FR+27}, s15")
a(f"v_lshlrev_b32 v{TT1}, 4, v1")
a("v_cmp_gt_u32 vcc, 48, v1")
a("s_and_saveexec_b64 s[92:93], vcc")
for blk in range(4):
    for r in range(5):
        a(f"ds_read_b128 v[{FR+4*r}:{FR+4*r+3}], v{TT1} offset:{L_RED + (blk*5+r)*768}")
    a("s_waitcnt lgkmcnt(0)")
    for r in range(5):
        for e in range(4):
            if blk == 0 and r == 0:
                a(f"v_mov_b32 v{SUM+e}, v{FR+e}")
            else:
                a(f"v_add_f32 v{SUM+e}, v{SUM+e}, v{FR+4*r+e}")
a("s_mov_b64 exec, -1")
a("v_cmp_le_u32 vcc, 48, v1")
a("s_and_saveexec_b64 s[92:93], vcc")
a("v_cmp_gt_u32 vcc, 60, v1")
a("s_and_b64 exec, exec, vcc")
for blk in range(16):
    for r in range(5):
        a(f"ds_read_b128 v[{FR+4*r}:{FR+4*r+3}], v{TT1} offset:{L_RED + 15360 - 768 + (blk*5+r)*192}")
    a("s_waitcnt lgkmcnt(0)")
    for r in range(5):
        for e in range(4):
            if blk == 0 and r == 0:
                a(f"v_mov_b32 v{SUM+e}, v{FR+e}")
            else:
                a(f"v_add_f32 v{SUM+e}, v{SUM+e}, v{FR+4*r+e}")
a("s_mov_b64 exec, -1")
a("v_cmp_gt_u32 vcc, 60, v1")
a("s_and_saveexec_b64 s[92:93], vcc")
a("s_lshl_b32 s14, s2, 10")
a(f"s_add_u32 s14, s14, {WS_QP}")
a(f"buffer_store_dwordx4 v[{SUM}:{SUM+3}], v{TT1}, s[24:27], s14 offen sc1")
a("s_mov_b64 exec, -1")
for e in range(4):
    a(f"v_mov_b32 v{FR+16+e}, -1")
a("s_lshl_b32 s14, s2, 10")
a(f"s_add_u32 s14, s14, {WS_PART}")
a("v_cmp_gt_u32 vcc, 49, v1")
a("s_and_saveexec_b64 s[92:93], vcc")
a(f"buffer_store_dwordx4 v[{FR+16}:{FR+19}], v{TT1}, s[24:27], s14 offen sc1")
a("s_mov_b64 exec, -1")
a("s_mul_i32 s14, s12, 20480")
a("s_mul_i32 s15, s11, 640")
a("s_add_u32 s14, s14, s15")
a(f"s_add_u32 s14, s14, {WS_OUTP}")
a("v_cmp_gt_u32 vcc, 40, v1")
a("s_and_saveexec_b64 s[92:93], vcc")
a(f"buffer_store_dwordx4 v[{FR+16}:{FR+19}], v{TT1}, s[24:27], s14 offen sc1")
a("s_mov_b64 exec, -1")
a(f"v_subrev_u32 v{FR+20}, 48, v1")
a(f"v_lshlrev_b32 v{FR+20}, 3, v{FR+20}")
a(f"buffer_load_dwordx2 v[{FR+22}:{FR+23}], v{FR+20}, s[48:51], s95 offen")
a("s_mov_b32 s94, 0")
a.label("L_flag")
a(f"buffer_load_dword v{FR+24}, v{FR+26}, s[60:63], 0 offen sc1")
a(f"buffer_load_dword v{FR+25}, v{FR+27}, s[60:63], 0 offen sc1")
a("s_waitcnt vmcnt(0)")
a(f"v_min_u32 v{FR+24}, v{FR+24}, v{FR+25}")
a("s_nop 0")
a(f"v_readfirstlane_b32 s15, v{FR+24}")
a("s_nop 3")
a("s_cmp_lg_u32 s15, 0")
a("s_cbranch_scc1 L_flag_ok")
a("s_sleep 8")
a("s_add_u32 s94, s94, 1")
a("s_cmp_lt_u32 s94, 0x100000")
a("s_cbranch_scc1 L_flag")
a.label("L_flag_ok")
a(f"v_mov_b32 v{FR+24}, 1")
a("v_cmp_eq_u32 vcc, 0, v1")
a("s_and_saveexec_b64 s[92:93], vcc")
a(f"buffer_atomic_add v{FR+24}, off, s[24:27], s96 offset:64")
a("s_mov_b64 exec, -1")
a("s_mov_b32 s94, 0")
a.label("L_qpoll")
a(f"buffer_load_dword v{FR+24}, off, s[24:27], s96 offset:64 sc1")
a("s_waitcnt vmcnt(0)")
a(f"v_readfirstlane_b32 s15, v{FR+24}")
a("s_nop 3")
a(f"s_cmp_ge_u32 s15, {NCHUNK}")
a("s_cbranch_scc1 L_qpoll_done")
a("s_sleep 2")
a("s_add_u32 s94, s94, 1")
a("s_cmp_lt_u32 s94, 0x100000")
a("s_cbranch_scc1 L_qpoll")
a.label("L_qpoll_done")
G = VBUF[0]
a("v_cmp_gt_u32 vcc, 60, v1")
a("s_and_saveexec_b64 s[92:93], vcc")
a("s_lshl_b32 s14, s11, 13")
a(f"s_add_u32 s14, s14, {WS_QP}")
for c in range(NCHUNK):
    if c and c % 4 == 0:
        a("s_add_u32 s14, s14, 4096")
    a(f"buffer_load_dwordx4 v[{G+4*c}:{G+4*c+3}], v{TT1}, s[24:27], s14 offen offset:{1024*(c%4)} sc1")
if HOLD:
    a("s_barrier")
a("s_waitcnt vmcnt(0)")
for e in range(4):
    a(f"v_mov_b32 v{SUM+e}, v{G+e}")
    for c in range(1, NCHUNK):
        a(f"v_add_f32 v{SUM+e}, v{SUM+e}, v{G+4*c+e}")
a(f"v_cvt_pk_bf16_f32 v{FR}, v{SUM}, v{SUM+1}")
a(f"v_cvt_pk_bf16_f32 v{FR+1}, v{SUM+2}, v{SUM+3}")
a(f"v_lshlrev_b32 v{FR+2}, 3, v1")
a("v_cmp_gt_u32 vcc, 48, v1")
a("s_and_saveexec_b64 s[100:101], vcc")
a(f"ds_write_b64 v{FR+2}, v[{FR}:{FR+1}] offset:{L_Q}")
a("s_mov_b64 exec, s[100:101]")
a(f"v_lshlrev_b32 v{SUM}, 16, v{FR}")
a(f"v_and_b32 v{SUM+1}, 0xffff0000, v{FR}")
a(f"v_lshlrev_b32 v{SUM+2}, 16, v{FR+1}")
a(f"v_and_b32 v{SUM+3}, 0xffff0000, v{FR+1}")
a(f"v_lshlrev_b32 v{FR+4}, 16, v{FR+22}")
a(f"v_and_b32 v{FR+5}, 0xffff0000, v{FR+22}")
a(f"v_lshlrev_b32 v{FR+6}, 16, v{FR+23}")
a(f"v_and_b32 v{FR+7}, 0xffff0000, v{FR+23}")
for e in range(4):
    x = SUM + e
    t = FR + 8 + e
    a(f"v_add_f32 v{x}, v{x}, v{FR+4+e}")
    rbf(a, x)
    a(f"v_mul_f32 v{t}, v{x}, v{x}")
    a(f"v_mul_f32 v{t}, {f32(0.044715)}, v{t}")
    a(f"v_add_f32 v{t}, 1.0, v{t}")
    a(f"v_mul_f32 v{t}, v{t}, v{x}")
    a(f"v_mul_f32 v{t}, {f32(-2.0*0.7978845608028654*LOG2E)}, v{t}")
    a(f"v_exp_f32 v{t}, v{t}")
    a("s_nop 1")
    a(f"v_add_f32 v{t}, 1.0, v{t}")
    a(f"v_rcp_f32 v{t}, v{t}")
    a("s_nop 1")
    a(f"v_mul_f32 v{x}, v{x}, v{t}")
    rbf(a, x)
a("v_cmp_le_u32 vcc, 48, v1")
a("s_and_b64 exec, exec, vcc")
a(f"v_lshlrev_b32 v{FR+20}, 1, v{FR+20}")
a(f"ds_write_b128 v{FR+20}, v[{SUM}:{SUM+3}] offset:{L_H}")
a("s_mov_b64 exec, -1")
a("s_waitcnt lgkmcnt(0)")
prefetch_all()
a.label("L_chain_done")
a("s_barrier")
for j in range(6):
    a(f"ds_read_b128 v[{Q+4*j}:{Q+4*j+3}], v3 offset:{L_Q+64*j}")
for k in range(2):
    a(f"v_mov_b32 v{AT[k]}, 1")
a("v_cmp_eq_u32 vcc, 0, v1")
a("s_and_saveexec_b64 s[92:93], vcc")
a(f"buffer_atomic_add v{AT[1]}, off, s[24:27], s96 sc0")
a(f"buffer_atomic_add v{AT[0]}, off, s[24:27], s96 sc0")
a("s_or_b64 exec, exec, s[92:93]")
a("s_waitcnt lgkmcnt(0)")
stamp(2)
a("v_cmp_le_u32 vcc, 24, v1")
a("v_mov_b32 v5, 0")
a(f"v_mov_b32 v{T}, 4")
a("s_nop 1")
a(f"v_cndmask_b32 v5, v5, v{T}, vcc")
for j in range(8):
    a(f"v_add_u32 v{BP+j}, {8*j}, v5")
    a(f"v_mov_b32 v{ACC+j}, 0")
a(f"v_mov_b32 v{M}, 0xff800000")
a(f"v_mov_b32 v{L}, 0")
a(f"v_mul_u32_u24 v{T}, 205, v0")
a(f"v_lshrrev_b32 v{RG}, 11, v{T}")
a(f"v_mul_u32_u24 v{T}, 10, v{RG}")
a(f"v_sub_u32 v{C24}, v0, v{T}")
a(f"v_mul_u32_u24 v7, 1280, v{RG}")
a(f"v_lshlrev_b32 v{T}, 4, v{C24}")
a(f"v_add_u32 v7, v7, v{T}")
a(f"v_mov_b32 v{T}, 0x40000000")
a("v_cmp_gt_u32 vcc, 480, v0")
a("s_nop 1")
a(f"v_cndmask_b32 v7, v{T}, v7, vcc")
KLA, VLA = WQR[0], WQR[0] + 1
a("s_mul_i32 s14, s10, 12288")
a(f"s_add_u32 s14, s14, {L_T2}")
a(f"v_add_u32 v{KLA}, s14, v2")
a(f"v_add_u32 v{VLA}, s14, v{FLATV}")

def mfma(buf):
    for j in range(6):
        c = "0" if j == 0 else f"v[{D}:{D+3}]"
        a(f"v_mfma_f32_16x16x32_bf16 v[{D}:{D+3}], v[{Q+4*j}:{Q+4*j+3}], v[{KBUF[buf]+4*j}:{KBUF[buf]+4*j+3}], {c}")

def grab(k):
    a(f"v_mov_b32 v{AT[k]}, 1")
    a("v_cmp_eq_u32 vcc, 0, v1")
    a("s_and_saveexec_b64 s[92:93], vcc")
    a(f"buffer_atomic_add v{AT[k]}, off, s[24:27], s96 sc0")
    a("s_or_b64 exec, exec, s[92:93]")

def mid(buf, vwait):
    a("s_nop 8")
    a(f"v_cvt_pk_bf16_f32 v{T}, v{D}, v{D}")
    a(f"v_lshlrev_b32 v{T}, 16, v{T}")
    a(f"v_mul_f32 v{T}, {f32(192 ** -0.5)}, v{T}")
    rbf(a, T)
    a(f"v_mul_f32 v{T}, {f32(LOG2E)}, v{T}")
    a("s_nop 1")
    a(f"v_max_f32_dpp v{T+1}, v{T}, v{T} row_ror:8 row_mask:0xf bank_mask:0xf")
    a("s_nop 1")
    a(f"v_max_f32_dpp v{T+1}, v{T+1}, v{T+1} row_ror:4 row_mask:0xf bank_mask:0xf")
    a("s_nop 1")
    a(f"v_max_f32_dpp v{T+1}, v{T+1}, v{T+1} row_ror:2 row_mask:0xf bank_mask:0xf")
    a("s_nop 1")
    a(f"v_max_f32_dpp v{T+1}, v{T+1}, v{T+1} row_ror:1 row_mask:0xf bank_mask:0xf")
    a(f"v_max_f32 v{T+1}, v{T+1}, v{M}")
    a(f"v_sub_f32 v{T+2}, v{M}, v{T+1}")
    a(f"v_sub_f32 v{T+3}, v{T}, v{T+1}")
    a(f"v_exp_f32 v{T+2}, v{T+2}")
    a(f"v_exp_f32 v{T+3}, v{T+3}")
    a(f"v_mov_b32 v{M}, v{T+1}")
    a(f"v_fma_f32 v{L}, v{L}, v{T+2}, v{T+3}")
    for j in range(8):
        a(f"ds_bpermute_b32 v{P+j}, v{BP+j}, v{T+3}")
    for j in range(8):
        a(f"v_mul_f32 v{ACC+j}, v{ACC+j}, v{T+2}")
    a("s_waitcnt lgkmcnt(0)")
    for j in range(8):
        w = vwait(j)
        if w:
            a(w)
        for r in range(4):
            wv = VBUF[buf] + 4 * j + r
            a(f"v_lshlrev_b32 v{T+4}, 16, v{wv}")
            a(f"v_and_b32 v{T+5}, 0xffff0000, v{wv}")
            a(f"v_fmac_f32 v{ACC+2*r}, v{T+4}, v{P+j}")
            a(f"v_fmac_f32 v{ACC+2*r+1}, v{T+5}, v{P+j}")

_idxn = [0]
def idx_to_off(k, sreg):
    n = _idxn[0]; _idxn[0] += 1
    a(f"v_readfirstlane_b32 s{sreg}, v{AT[k]}")
    a("s_nop 3")
    a(f"s_cmp_ge_u32 s{sreg}, 0x1000")
    a(f"s_cbranch_scc1 L_idx{n}")
    a("s_waitcnt vmcnt(0)")
    a(f"v_readfirstlane_b32 s{sreg}, v{AT[k]}")
    a("s_nop 3")
    a.label(f"L_idx{n}")
    a(f"s_sub_u32 s{sreg}, s{sreg}, {0x1000 - NSTAT}")

a("s_waitcnt vmcnt(0)")
mfma(0)
EXPG = os.environ.get("EXPG", "0")
if EXPG == "1":
    a(f"s_add_u32 s91, s90, {128*16*384}")
    load_k(0, 91)
    mid(0, lambda j: None)
    load_v(0, 91)
    a("s_waitcnt vmcnt(0)")
else:
    for j in range(6):
        a(f"ds_read_b128 v[{KBUF[0]+4*j}:{KBUF[0]+4*j+3}], v{KLA} offset:{64*j}")
    mid(0, lambda j: None)
    for j in range(8):
        a(f"ds_read_b128 v[{VBUF[0]+4*j}:{VBUF[0]+4*j+3}], v{VLA} offset:{6144+768*j}")
mfma(1)
idx_to_off(1, 91)
a(f"s_mul_i32 s91, s91, {16*384}")
load_k(1, 91)
grab(1)
mid(1, lambda j: None)
load_v(1, 91)
a("s_waitcnt lgkmcnt(0)")
mfma(0)
idx_to_off(0, 91)
a(f"s_mul_i32 s91, s91, {16*384}")
load_k(0, 91)
grab(0)
mid(0, lambda j: None)
load_v(0, 91)
def tail_loads(buf):
    kb = KBUF[buf]
    a(f"s_mul_i32 s14, s11, {192*1280}")
    a("s_mul_i32 s15, s12, 160")
    a("s_add_u32 s14, s14, s15")
    for i in range(4):
        a(f"buffer_load_dwordx4 v[{kb+4*i}:{kb+4*i+3}], v7, s[40:43], s14 offen")
        a(f"s_add_u32 s14, s14, {48*1280}")
    a(f"s_mul_i32 s14, s11, {48*1280}")
    a("s_add_u32 s14, s14, s15")
    a(f"buffer_load_dwordx4 v[{kb+16}:{kb+19}], v7, s[44:47], s14 offen")

a.label("L_loop")
for buf in (1, 0):
    a("s_waitcnt vmcnt(22)")
    mfma(buf)
    idx_to_off(buf, 91)
    a(f"s_cmp_ge_u32 s91, {NT_HEAD}")
    a(f"s_cbranch_scc1 L_drain{buf}")
    a(f"s_mul_i32 s91, s91, {16*384}")
    load_k(buf, 91)
    grab(buf)
    mid(buf, lambda j: f"s_waitcnt vmcnt({20 + 7 - j})")
    load_v(buf, 91)
a("s_branch L_loop")
for buf in (1, 0):
    other = 1 - buf
    a.label(f"L_drain{buf}")
    tail_loads(buf)
    mid(buf, lambda j: f"s_waitcnt vmcnt({19 + 7 - j})")
    a("s_waitcnt vmcnt(13)")
    mfma(other)
    mid(other, lambda j: f"s_waitcnt vmcnt({5 + 7 - j})")
    a(f"s_mov_b32 s94, {KBUF[buf]}")
    a(f"s_branch L_fin{buf}")
stamp_done = False

def finish(buf):
    KB = KBUF[buf]
    R = VBUF[0]
    sfx = str(buf)
    if buf == 1:
        stamp(3)
    a("s_nop 1")
    for sh in (8, 4, 2, 1):
        a(f"v_add_f32_dpp v{L}, v{L}, v{L} row_ror:{sh} row_mask:0xf bank_mask:0xf")
        a("s_nop 1")
    a("s_lshl_b32 s14, s10, 2")
    a(f"v_mov_b32 v{T}, s14")
    a(f"ds_write_b32 v{T}, v{M} offset:{L_WM}")
    a(f"ds_write_b32 v{T}, v{L} offset:{L_WM+64}")
    a("s_mul_i32 s14, s10, 1536")
    a(f"v_lshlrev_b32 v{T}, 5, v1")
    a(f"v_add_u32 v{T}, s14, v{T}")
    a("v_cmp_gt_u32 vcc, 48, v1")
    a("s_and_saveexec_b64 s[92:93], vcc")
    a(f"ds_write_b128 v{T}, v[{ACC}:{ACC+3}] offset:{L_ACC}")
    a(f"ds_write_b128 v{T}, v[{ACC+4}:{ACC+7}] offset:{L_ACC+16}")
    a("s_or_b64 exec, exec, s[92:93]")
    a("s_waitcnt vmcnt(0)")
    for i in range(20):
        a(f"v_mov_b32 v{WQR[1]+i}, v{KB+i}")
    if buf == 0:
        a("s_branch L_common")

a.label("L_fin0")
finish(0)
a.label("L_fin1")
finish(1)
a.label("L_common")
KB = WQR[1]
R = VBUF[0]
a("s_waitcnt lgkmcnt(0)")
a("s_barrier")
a("v_cmp_gt_u32 vcc, 192, v0")
a("s_and_saveexec_b64 s[92:93], vcc")
a("s_cbranch_execz L_rec_done")
a(f"v_mov_b32 v{T}, 0")
a(f"v_lshlrev_b32 v{T+1}, 2, v0")
for w in range(NW):
    a(f"ds_read_b32 v{R+w}, v{T} offset:{L_WM+4*w}")
    a(f"ds_read_b32 v{R+8+w}, v{T} offset:{L_WM+64+4*w}")
    a(f"ds_read_b32 v{R+16+2*w}, v{T+1} offset:{L_ACC+1536*w}")
    a(f"ds_read_b32 v{R+17+2*w}, v{T+1} offset:{L_ACC+1536*w+768}")
a("s_waitcnt lgkmcnt(0)")
a(f"v_mov_b32 v{T+2}, v{R}")
for w in range(1, NW):
    a(f"v_max_f32 v{T+2}, v{T+2}, v{R+w}")
a(f"v_mov_b32 v{T+3}, 0")
a(f"v_mov_b32 v{T+4}, 0")
for w in range(NW):
    a(f"v_sub_f32 v{T+5}, v{R+w}, v{T+2}")
    a(f"v_exp_f32 v{T+5}, v{T+5}")
    a(f"v_add_f32 v{P}, v{R+16+2*w}, v{R+17+2*w}")
    a(f"v_fmac_f32 v{T+3}, v{T+5}, v{R+8+w}")
    a(f"v_fmac_f32 v{T+4}, v{T+5}, v{P}")
a("s_lshl_b32 s14, s2, 10")
a(f"s_add_u32 s14, s14, {WS_PART}")
a(f"buffer_store_dword v{T+4}, v{T+1}, s[24:27], s14 offen sc1")
a("v_cmp_eq_u32 vcc, 0, v0")
a("s_and_saveexec_b64 s[100:101], vcc")
a(f"buffer_store_dword v{T+2}, v{T+1}, s[24:27], s14 offen offset:768 sc1")
a(f"buffer_store_dword v{T+3}, v{T+1}, s[24:27], s14 offen offset:772 sc1")
a("s_mov_b64 exec, s[100:101]")
stamp(4)
a("s_lshl_b32 s15, s11, 13")
a(f"s_add_u32 s15, s15, {WS_PART}")
a(f"v_mov_b32 v{T}, 0")
a("s_mov_b32 s94, 0")
a.label("L_poll")
a("s_mov_b32 s14, s15")
for c in range(NCHUNK):
    if c and c % 4 == 0:
        a("s_add_u32 s14, s14, 4096")
    a(f"buffer_load_dword v{R+c}, v{T+1}, s[24:27], s14 offen offset:{1024*(c%4)} sc1")
    a(f"buffer_load_dwordx2 v[{R+8+2*c}:{R+9+2*c}], v{T}, s[24:27], s14 offen offset:{1024*(c%4)+768} sc1")
a("s_waitcnt vmcnt(0)")
a(f"v_and_b32 v{T+2}, v{R}, v{R+1}")
for i in range(2, 24):
    a(f"v_max_u32 v{T+2}, v{T+2}, v{R+i}") if False else None
a(f"v_max_u32 v{T+2}, v{R}, v{R+1}")
for i in range(2, 24):
    a(f"v_max_u32 v{T+2}, v{T+2}, v{R+i}")
a(f"v_cmp_eq_u32 vcc, -1, v{T+2}")
a("s_cbranch_vccz L_poll_done")
a("s_sleep 1")
a("s_add_u32 s94, s94, 1")
a("s_cmp_lt_u32 s94, 0x100000")
a("s_cbranch_scc1 L_poll")
a.label("L_poll_done")
stamp(5)
a(f"v_mov_b32 v{T+2}, v{R+8}")
for c in range(1, NCHUNK):
    a(f"v_max_f32 v{T+2}, v{T+2}, v{R+8+2*c}")
a(f"v_mov_b32 v{T+3}, 0")
a(f"v_mov_b32 v{T+4}, 0")
for c in range(NCHUNK):
    a(f"v_sub_f32 v{T+5}, v{R+8+2*c}, v{T+2}")
    a(f"v_exp_f32 v{T+5}, v{T+5}")
    a("s_nop 0")
    a(f"v_fmac_f32 v{T+3}, v{T+5}, v{R+9+2*c}")
    a(f"v_fmac_f32 v{T+4}, v{T+5}, v{R+c}")
a(f"v_rcp_f32 v{T+5}, v{T+3}")
a("s_nop 1")
a(f"v_fma_f32 v{T+2}, -v{T+3}, v{T+5}, 1.0")
a(f"v_fmac_f32 v{T+5}, v{T+2}, v{T+5}")
a(f"v_mul_f32 v{T+4}, v{T+4}, v{T+5}")
rbf(a, T + 4)
a(f"ds_write_b32 v{T+1}, v{T+4} offset:{L_O}")
a.label("L_rec_done")
a("s_mov_b64 exec, -1")
a("s_waitcnt lgkmcnt(0)")
a("s_barrier")
a(f"v_lshlrev_b32 v5, 2, v{RG}")
for i in range(4):
    a(f"ds_read_b32 v{R+i}, v5 offset:{L_O + 48*4*i}")
a(f"ds_read_b32 v{R+4}, v5 offset:{L_H}")
for r in range(8):
    a(f"v_mov_b32 v{ACC+r}, 0")
a("s_waitcnt lgkmcnt(0)")
for i in range(4):
    for r in range(4):
        a(f"v_lshlrev_b32 v{T+4}, 16, v{KB+4*i+r}")
        a(f"v_and_b32 v{T+5}, 0xffff0000, v{KB+4*i+r}")
        a(f"v_fmac_f32 v{ACC+2*r}, v{T+4}, v{R+i}")
        a(f"v_fmac_f32 v{ACC+2*r+1}, v{T+5}, v{R+i}")
for r in range(4):
    a(f"v_lshlrev_b32 v{T+4}, 16, v{KB+16+r}")
    a(f"v_and_b32 v{T+5}, 0xffff0000, v{KB+16+r}")
    a(f"v_mul_f32 v{P+2*r}, v{T+4}, v{R+4}")
    a(f"v_mul_f32 v{P+2*r+1}, v{T+5}, v{R+4}")
a(f"v_mul_u32_u24 v5, 640, v{RG}")
a(f"v_lshlrev_b32 v{T}, 5, v{C24}")
a(f"v_add_u32 v5, v5, v{T}")
a("v_cmp_gt_u32 vcc, 480, v0")
a("s_and_saveexec_b64 s[92:93], vcc")
a(f"ds_write_b128 v5, v[{ACC}:{ACC+3}] offset:{L_RED}")
a(f"ds_write_b128 v5, v[{ACC+4}:{ACC+7}] offset:{L_RED+16}")
a(f"ds_write_b128 v5, v[{P}:{P+3}] offset:{L_RED+320}")
a(f"ds_write_b128 v5, v[{P+4}:{P+7}] offset:{L_RED+336}")
a("s_or_b64 exec, exec, s[92:93]")
a("s_waitcnt lgkmcnt(0)")
a("s_barrier")
a("v_cmp_gt_u32 vcc, 160, v0")
a("s_and_saveexec_b64 s[92:93], vcc")
a("s_cbranch_execz L_outp_done")
a("v_lshlrev_b32 v5, 2, v0")
for blk in range(2):
    for r in range(24):
        a(f"ds_read_b32 v{R+r}, v5 offset:{L_RED + (blk*24+r)*640}")
    a("s_waitcnt lgkmcnt(0)")
    for r in range(24):
        if blk == 0 and r == 0:
            a(f"v_mov_b32 v{T}, v{R}")
        else:
            a(f"v_add_f32 v{T}, v{T}, v{R+r}")
a("s_mul_i32 s14, s12, 20480")
a("s_mul_i32 s15, s11, 640")
a("s_add_u32 s14, s14, s15")
a(f"s_add_u32 s14, s14, {WS_OUTP}")
a(f"buffer_store_dword v{T}, v5, s[24:27], s14 offen sc1")
a.label("L_outp_done")
a("s_mov_b64 exec, -1")
stamp(6)
a("s_cmp_lg_u32 s11, 0")
a("s_cbranch_scc1 L_done")
a("v_cmp_gt_u32 vcc, 160, v0")
a("s_and_saveexec_b64 s[92:93], vcc")
a("v_lshlrev_b32 v5, 2, v0")
a("s_mul_i32 s15, s12, 20480")
a(f"s_add_u32 s15, s15, {WS_OUTP}")
F = KBUF[0]
a(f"v_subrev_u32 v{T+1}, 80, v0")
a("v_cmp_gt_u32 vcc, 80, v0")
a("s_nop 1")
a(f"v_cndmask_b32 v{T+1}, v{T+1}, v0, vcc")
a(f"v_lshlrev_b32 v{T+1}, 1, v{T+1}")
a("s_mul_i32 s14, s12, 160")
a(f"buffer_load_ushort v{P}, v{T+1}, s[36:39], s14 offen")
a(f"buffer_load_ushort v{P+1}, v{T+1}, s[52:55], s14 offen")
a("s_cbranch_execz L_fpoll_done")
a("s_mov_b32 s94, 0")
a.label("L_fpoll")
a("s_mov_b32 s14, s15")
for hh in range(32):
    if hh and hh % 4 == 0:
        a("s_add_u32 s14, s14, 2560")
    a(f"buffer_load_dword v{F+hh}, v5, s[24:27], s14 offen offset:{640*(hh%4)} sc1")
a("s_waitcnt vmcnt(0)")
a(f"v_max_u32 v{T+2}, v{F}, v{F+1}")
for hh in range(2, 32):
    a(f"v_max_u32 v{T+2}, v{T+2}, v{F+hh}")
a(f"v_cmp_eq_u32 vcc, -1, v{T+2}")
a("s_cbranch_vccz L_fpoll_done")
a("s_sleep 1")
a("s_add_u32 s94, s94, 1")
a("s_cmp_lt_u32 s94, 0x100000")
a("s_cbranch_scc1 L_fpoll")
a.label("L_fpoll_done")
a("s_mul_i32 s15, s12, 160")
a("s_waitcnt vmcnt(0)")
a(f"v_mov_b32 v{T+2}, v{P}")
a(f"v_mov_b32 v{T+3}, v{P+1}")
a(f"v_mov_b32 v{T}, v{F}")
for hh in range(1, 32):
    a(f"v_add_f32 v{T}, v{T}, v{F+hh}")
rbf(a, T)
a(f"v_lshlrev_b32 v{T+3}, 16, v{T+3}")
a(f"v_add_f32 v{T+4}, v{T}, v{T+3}")
rbf(a, T + 4)
a(f"v_mul_f32 v{T+5}, {f32(-LOG2E)}, v{T+4}")
a(f"v_exp_f32 v{T+5}, v{T+5}")
a("s_nop 1")
a(f"v_add_f32 v{T+5}, 1.0, v{T+5}")
a(f"v_rcp_f32 v{T+5}, v{T+5}")
a("s_nop 1")
a(f"v_mul_f32 v{T+4}, v{T+4}, v{T+5}")
rbf(a, T + 4)
a(f"ds_write_b32 v5, v{T+4} offset:{L_RED}")
a("s_or_b64 exec, exec, s[92:93]")
a("s_waitcnt lgkmcnt(0)")
a("s_barrier")
a("v_cmp_gt_u32 vcc, 80, v0")
a("s_and_saveexec_b64 s[92:93], vcc")
a("s_cbranch_execz L_done")
a(f"ds_read_b32 v{T+4}, v5 offset:{L_RED+320}")
a("s_waitcnt lgkmcnt(0)")
a(f"v_mul_f32 v{T}, v{T}, v{T+4}")
rbf(a, T)
a(f"v_lshlrev_b32 v{T+2}, 16, v{T+2}")
a(f"v_add_f32 v{T}, v{T}, v{T+2}")
a(f"v_cvt_pk_bf16_f32 v{T}, v{T}, v{T}")
a(f"buffer_store_short v{T}, v{T+1}, s[56:59], s15 offen")
a("s_mov_b64 exec, -1")
stamp(7)
a.label("L_done")
a("s_endpgm")

out += a.text()
nv = 254 if DIAG else NV
out += f""".section .rodata,"a"
.p2align 6
.amdhsa_kernel {KN}
  .amdhsa_next_free_vgpr {nv}
  .amdhsa_next_free_sgpr 102
  .amdhsa_accum_offset {(nv+3)//4*4}
  .amdhsa_group_segment_fixed_size 0
  .amdhsa_kernarg_size 104
  .amdhsa_user_sgpr_count 2
  .amdhsa_user_sgpr_kernarg_segment_ptr 1
  .amdhsa_system_sgpr_workgroup_id_x 1
.end_amdhsa_kernel
"""
open(OUT, "w").write(out)
print("wrote", OUT, len(out), "vgpr", nv, "lds", LDS_BYTES)
```

```python
import struct, sys, os, re, math

NAME = "recurrent_scan__gqa_block_cached__mixer_channel_mlp__decode"
OUT = os.environ.get("OUT", "cdna_kernels/%s.s" % NAME)
DIAG = os.environ.get("DIAG", "0") == "1"
KVF = os.environ.get("KVF", "sc1 nt")

NW = 8
NCHUNK = 8
SK = 8192
NT_HEAD = SK // 16
NSTAT = 3 * NW * NCHUNK

WS_CTR = 0
WS_CG = 32 * 256
WS_PART = 65536
WS_OUTP = WS_PART + 32 * NCHUNK * 1024
WS_QP = WS_OUTP + 8 * 32 * 640
WS_SIZE = 402653184

KA_X, KA_K, KA_V, KA_WQ, KA_WO, KA_BX, KA_W1, KA_B1, KA_W2, KA_B2, KA_OUT, KA_DBG, KA_WS = [8 * i for i in range(13)]

L_XN = 0
L_Y = 2560
L_RED = 5120
L_ACC = 5120
L_Q = 35840
L_H = 36224
L_WM = 36416
L_O = 36544
L_FLAG = 37312
L_T2 = 37376
LDS_BYTES = L_T2 + NW * 12288

def f32(x):
    return "0x%08x" % struct.unpack("<I", struct.pack("<f", x))[0]
LOG2E = 1.4426950408889634
for t in range(480):
    assert (t * 171) >> 12 == t // 24 and (t * 171) >> 10 == t // 6 and (t * 205) >> 11 == t // 10

class A:
    def __init__(self):
        self.l = []
    def __call__(self, s):
        for line in s.split("\n"):
            line = line.strip()
            m = re.search(r"offset:(\d+)", line)
            if m and line.startswith("buffer_"):
                assert int(m.group(1)) <= 4095, line
            if m and line.startswith("ds_"):
                assert int(m.group(1)) <= 65535, line
            self.l.append("    " + line)
    def label(self, s):
        self.l.append(s + ":")
    def text(self):
        return "\n".join(self.l) + "\n"

def srd(a, d, b, nbytes, add=None):
    if add is None:
        a(f"s_mov_b32 s{d}, s{b}")
        a(f"s_and_b32 s{d+1}, s{b+1}, 0xffff")
    else:
        a(f"s_add_u32 s{d}, s{b}, {add}")
        a(f"s_addc_u32 s{d+1}, s{b+1}, 0")
        a(f"s_and_b32 s{d+1}, s{d+1}, 0xffff")
    a(f"s_mov_b32 s{d+2}, {nbytes}")
    a(f"s_mov_b32 s{d+3}, 0x00020000")

def rbf(a, v):
    a(f"v_cvt_pk_bf16_f32 v{v}, v{v}, v{v}")
    a(f"v_lshlrev_b32 v{v}, 16, v{v}")

def wave_sum(a, v, s):
    a("s_nop 1")
    for sh in (1, 2, 4, 8):
        a(f"v_add_f32_dpp v{v}, v{v}, v{v} row_shr:{sh} row_mask:0xf bank_mask:0xf bound_ctrl:0")
        a("s_nop 1")
    a(f"v_add_f32_dpp v{v}, v{v}, v{v} row_bcast:15 row_mask:0xa bank_mask:0xf")
    a("s_nop 1")
    a(f"v_add_f32_dpp v{v}, v{v}, v{v} row_bcast:31 row_mask:0xc bank_mask:0xf")
    a("s_nop 1")
    a(f"v_readlane_b32 s{s}, v{v}, 63")
    a("s_nop 3")

def layernorm(a, e, t0, t1, t2, s):
    a(f"v_add_f32 v{t0}, v{e}, v{e+1}")
    for i in range(2, 10):
        a(f"v_add_f32 v{t0}, v{t0}, v{e+i}")
    wave_sum(a, t0, s)
    a(f"v_mov_b32 v{t1}, s{s}")
    a(f"v_mul_f32 v{t1}, {f32(1.0/640)}, v{t1}")
    a(f"v_mov_b32 v{t0}, 0")
    for i in range(10):
        a(f"v_sub_f32 v{t2}, v{e+i}, v{t1}")
        a(f"v_fmac_f32 v{t0}, v{t2}, v{t2}")
    wave_sum(a, t0, s)
    a(f"v_mov_b32 v{t0}, s{s}")
    a(f"v_mul_f32 v{t0}, {f32(1.0/640)}, v{t0}")
    rbf(a, t0)
    rbf(a, t1)
    a(f"v_add_f32 v{t0}, {f32(1e-5)}, v{t0}")
    rbf(a, t0)
    a(f"v_sqrt_f32 v{t0}, v{t0}")
    a("s_nop 1")
    rbf(a, t0)
    a(f"v_rcp_f32 v{t2}, v{t0}")
    a("s_nop 1")
    a(f"v_fma_f32 v{t0}, -v{t0}, v{t2}, 1.0")
    a(f"v_fmac_f32 v{t2}, v{t0}, v{t2}")
    for i in range(10):
        a(f"v_sub_f32 v{e+i}, v{e+i}, v{t1}")
        rbf(a, e + i)
        a(f"v_mul_f32 v{e+i}, v{e+i}, v{t2}")
        rbf(a, e + i)

def stamp(i):
    if not DIAG:
        return
    a(f"s_cmp_lg_u32 s10, 0")
    a(f"s_cbranch_scc1 L_st{i}")
    a("s_memrealtime s[4:5]")
    a("s_waitcnt lgkmcnt(0)")
    a("s_lshl_b32 s6, s2, 6")
    a(f"s_add_u32 s6, s6, {(1<<20) + 8*i}")
    a("v_mov_b32 v252, s4")
    a("v_mov_b32 v253, s5")
    a("s_mov_b64 s[4:5], exec")
    a("s_mov_b64 exec, 1")
    a("buffer_store_dwordx2 v[252:253], off, s[24:27], s6")
    a("s_mov_b64 exec, s[4:5]")
    a.label(f"L_st{i}")

a = A()
hdr = open("cdna_kernels/%s.s.ref" % NAME).read().split("\n")
comment = [l for l in hdr if l.startswith(";") and "@launch" not in l]
out = "\n".join(comment) + "\n"
out += f"; @launch grid=({32*NCHUNK},1,1) block=({64*NW},1,1) lds={LDS_BYTES}\n"
out += '.amdgcn_target "amdgcn-amd-amdhsa--gfx950"\n.text\n'
KN = NAME + "_kernel"
a(f".globl {KN}")
a(".p2align 8")
a(f".type {KN},@function")
a.label(KN)

Q = 8
KBUF = [32, 88]
VBUF = [56, 112]
ACC = 144
M, L = 152, 153
T = 154
P = 160
D = 168
BP = 172
RG, C24, HV, FLATV = 180, 181, 184, 185
AT = [182, 183]
W1V, RG6A, C6 = 186, 187, D + 3
WS0 = 188
NSLOT = 16
WQR = [WS0 + 4 * i for i in range(NSLOT)]
NV = WS0 + 4 * NSLOT
QA = ACC
XV = P
TT0, TT1 = T, T + 1

a(f"s_cmp_ge_u32 s2, {32*NCHUNK}")
a("s_cbranch_scc1 L_done")
a(f"s_load_dwordx4 s[64:67], s[0:1], {KA_X}")
a(f"s_load_dwordx4 s[68:71], s[0:1], {KA_V}")
a(f"s_load_dwordx2 s[72:73], s[0:1], {KA_WO}")
a(f"s_load_dwordx4 s[76:79], s[0:1], {KA_W1}")
a(f"s_load_dwordx4 s[80:83], s[0:1], {KA_W2}")
a(f"s_load_dwordx4 s[84:87], s[0:1], {KA_OUT}")
a(f"s_load_dwordx2 s[88:89], s[0:1], {KA_WS}")
a("v_lshrrev_b32 v1, 6, v0")
a("s_nop 0")
a("v_readfirstlane_b32 s10, v1")
a("v_and_b32 v1, 63, v0")
a("s_lshr_b32 s11, s2, 3")
a("s_and_b32 s12, s2, 7")
a("s_mul_i32 s13, s11, 3145728")
a("v_and_b32 v2, 15, v1")
a("v_mul_u32_u24 v2, 384, v2")
a("v_lshrrev_b32 v3, 4, v1")
a("v_lshlrev_b32 v3, 4, v3")
a("v_add_u32 v2, v2, v3")
a(f"v_lshlrev_b32 v{FLATV}, 4, v1")
a(f"v_add_u32 v{HV}, 4096, v{FLATV}")
a("v_mov_b32 v5, 0x40000000")
a("v_cmp_gt_u32 vcc, 48, v1")
a("s_nop 1")
a(f"v_cndmask_b32 v4, v5, v{FLATV}, vcc")
a("v_add_u32 v6, 3072, v4")
a(f"v_mul_u32_u24 v{TT0}, 171, v0")
a(f"v_lshrrev_b32 v{RG}, 12, v{TT0}")
a(f"v_mul_u32_u24 v{TT1}, 24, v{RG}")
a(f"v_sub_u32 v{C24}, v0, v{TT1}")
a(f"v_lshrrev_b32 v{TT0}, 10, v{TT0}")
a(f"v_mul_u32_u24 v{TT1}, 6, v{TT0}")
a(f"v_sub_u32 v{C6}, v0, v{TT1}")
a(f"v_mul_u32_u24 v{W1V}, 3072, v{TT0}")
a(f"v_lshlrev_b32 v{TT1}, 4, v{C6}")
a(f"v_add_u32 v{W1V}, v{W1V}, v{TT1}")
a(f"v_lshlrev_b32 v{RG6A}, 2, v{TT0}")
a("s_mov_b32 s14, 12288")
a(f"v_mul_lo_u32 v7, v{RG}, s14")
a(f"v_lshlrev_b32 v{TT1}, 4, v{C24}")
a(f"v_add_u32 v7, v7, v{TT1}")
a("v_mov_b32 v5, 0x40000000")
a("v_cmp_gt_u32 vcc, 480, v0")
a("s_nop 1")
a("v_cndmask_b32 v7, v5, v7, vcc")
a(f"v_cndmask_b32 v{W1V}, v5, v{W1V}, vcc")
a("s_lshl_b32 s90, s12, 3")
a("s_add_u32 s90, s90, s10")
a(f"s_mul_i32 s90, s90, {16*384}")
a("s_lshl_b32 s96, s11, 8")
a(f"s_add_u32 s96, s96, {WS_CTR}")
a("s_waitcnt lgkmcnt(0)")
srd(a, 36, 64, 1280)
srd(a, 16, 66, 3145728, add="s13")
srd(a, 20, 68, 3145728, add="s13")
srd(a, 28, 70, 640 * 12288)
srd(a, 32, 76, 640 * 3072)
srd(a, 24, 88, WS_SIZE)
srd(a, 60, 86, 256)
stamp(0)
XR = Q + 18
E = Q
a("v_lshlrev_b32 v5, 2, v1")
for i in range(5):
    a(f"buffer_load_dword v{XR+i}, v5, s[36:39], 0 offen offset:{256*i}")
a("s_cmp_lg_u32 s10, 0")
a("s_cbranch_scc1 L_init_done")
a(f"v_mov_b32 v{TT0}, 0")
a(f"v_lshlrev_b32 v{TT1}, 6, v1")
a("s_cmp_lg_u32 s12, 0")
a("s_cbranch_scc1 L_init_cg")
a("v_cmp_eq_u32 vcc, 0, v1")
a(f"v_mov_b32 v{TT0+3}, 0x1000")
a("s_nop 0")
a(f"v_cndmask_b32 v{TT0+3}, v{TT0}, v{TT0+3}, vcc")
a("v_cmp_gt_u32 vcc, 3, v1")
a("s_and_saveexec_b64 s[92:93], vcc")
a(f"buffer_store_dword v{TT0+3}, v{TT1}, s[24:27], s96 offen sc1")
a("s_mov_b64 exec, -1")
for e in range(4):
    a(f"v_mov_b32 v{WQR[10]+e}, -1")
a("s_lshl_b32 s14, s11, 13")
a(f"s_add_u32 s14, s14, {WS_QP}")
for c in range(NCHUNK):
    if c and c % 4 == 0:
        a("s_add_u32 s14, s14, 4096")
    a(f"buffer_store_dwordx4 v[{WQR[10]}:{WQR[10]+3}], v{FLATV}, s[24:27], s14 offen offset:{1024*(c%4)} sc1")
a("s_waitcnt vmcnt(0)")
a("s_lshl_b32 s14, s11, 2")
a(f"v_mov_b32 v{TT1}, s14")
a(f"v_mov_b32 v{TT0+2}, 1")
a("v_cmp_eq_u32 vcc, 0, v1")
a("s_and_saveexec_b64 s[92:93], vcc")
a(f"buffer_atomic_add v{TT0+2}, v{TT1}, s[60:63], 0 offen")
a("s_mov_b64 exec, -1")
a.label("L_init_cg")
a("s_cmp_lg_u32 s11, 0")
a("s_cbranch_scc1 L_init_done")
a("s_lshl_b32 s14, s12, 8")
a(f"s_add_u32 s14, s14, {WS_CG}")
a("v_cmp_eq_u32 vcc, 0, v1")
a("s_and_saveexec_b64 s[92:93], vcc")
a(f"buffer_store_dword v{TT0}, off, s[24:27], s14 sc1")
a("s_waitcnt vmcnt(0)")
a("s_lshl_b32 s14, s12, 2")
a("s_add_u32 s14, s14, 128")
a(f"v_mov_b32 v{TT1}, s14")
a(f"v_mov_b32 v{TT0+2}, 1")
a(f"buffer_atomic_add v{TT0+2}, v{TT1}, s[60:63], 0 offen")
a("s_mov_b64 exec, -1")
a.label("L_init_done")
a("s_mul_i32 s14, s11, 384")
a(f"s_mul_i32 s15, s12, {80*12288}")
a("s_add_u32 s14, s14, s15")
a("s_mul_i32 s95, s11, 96")
a(f"s_mul_i32 s15, s12, {80*3072}")
a("s_add_u32 s15, s95, s15")
for i in range(4):
    if i:
        a(f"s_add_u32 s14, s14, {20*12288}")
    a(f"buffer_load_dwordx4 v[{WQR[i]}:{WQR[i]+3}], v7, s[28:31], s14 offen")
a(f"buffer_load_dwordx4 v[{WQR[4]}:{WQR[4]+3}], v{W1V}, s[32:35], s15 offen")
def k_ins(buf, soff):
    if os.environ.get("FLATK") == "1":
        return [f"buffer_load_dwordx4 v[{KBUF[buf]+4*j}:{KBUF[buf]+4*j+3}], v{FLATV if j < 4 else HV}, s[16:19], s{soff} offen offset:{1024*(j%4)} nt" for j in range(6)]
    return [f"buffer_load_dwordx4 v[{KBUF[buf]+4*j}:{KBUF[buf]+4*j+3}], v2, s[16:19], s{soff} offen offset:{64*j} {KVF}" for j in range(6)]
def v_ins(buf, soff):
    return [f"buffer_load_dwordx4 v[{VBUF[buf]+4*j}:{VBUF[buf]+4*j+3}], v{4 if j < 4 else 6}, s[20:23], s{soff} offen offset:{768*(j%4)} {KVF}" for j in range(8)]
def load_k(buf, soff):
    for l in k_ins(buf, soff):
        a(l)
def load_v(buf, soff):
    for l in v_ins(buf, soff):
        a(l)
a(f"s_add_u32 s91, s90, {64*16*384}")
a(f"s_add_u32 s99, s90, {128*16*384}")
a("s_mul_i32 s94, s10, 12288")
a(f"s_add_u32 s98, s94, {L_T2}")
EARLY = int(os.environ.get("EARLY", "0"))
def prefetch_all(first=True):
    if first:
        load_k(0, 90)
        load_v(0, 90)
    load_k(1, 91)
    load_v(1, 91)
    for half, sr in ((0, 16), (1, 20)):
        for grp in range(2):
            a(f"s_add_u32 s94, s98, {half*6144 + grp*3072}")
            a("s_mov_b32 m0, s94")
            a(f"s_add_u32 s94, s99, {grp*3072}")
            for j in range(3):
                a(f"buffer_load_dwordx4 v{FLATV}, s[{sr}:{sr+3}], s94 offen offset:{1024*j} {KVF} lds")
srd(a, 40, 72, 6144 * 1280)
srd(a, 48, 78, 3072)
srd(a, 44, 80, 1536 * 1280)
srd(a, 52, 82, 1280)
srd(a, 56, 84, 1280)
if EARLY:
    a("s_cmp_eq_u32 s10, 0")
    a("s_cbranch_scc1 L_noearly")
    load_k(0, 90)
    load_v(0, 90)
    a("s_waitcnt vmcnt(19)")
    a("s_branch L_early_done")
    a.label("L_noearly")
    a("s_waitcnt vmcnt(5)")
    a.label("L_early_done")
else:
    a("s_waitcnt vmcnt(5)")
for i in range(5):
    a(f"v_lshlrev_b32 v{E+2*i}, 16, v{XR+i}")
    a(f"v_and_b32 v{E+2*i+1}, 0xffff0000, v{XR+i}")
t0, t1, t2 = Q + 12, Q + 13, Q + 14
layernorm(a, E, t0, t1, t2, 15)
a("v_lshlrev_b32 v5, 3, v1")
for i in range(5):
    a(f"ds_write_b64 v5, v[{E+2*i}:{E+2*i+1}] offset:{L_XN+512*i}")
layernorm(a, E, t0, t1, t2, 15)
for i in range(5):
    a(f"ds_write_b64 v5, v[{E+2*i}:{E+2*i+1}] offset:{L_Y+512*i}")
a("s_waitcnt lgkmcnt(0)")
a("s_barrier")
stamp(1)
for r in range(8):
    a(f"v_mov_b32 v{QA+r}, 0")
a("s_mul_i32 s15, s12, 320")
a(f"v_lshlrev_b32 v5, 2, v{RG}")
a("v_add_u32 v5, s15, v5")
a(f"v_add_u32 v{TT0}, s15, v{RG6A}")
XQ = P
for i in range(4):
    a(f"ds_read_b32 v{XQ+i}, v5 offset:{L_XN + i*80}")
a(f"ds_read_b32 v{XQ+4}, v{TT0} offset:{L_Y}")
a(f"s_waitcnt vmcnt({14 if EARLY else 0}) lgkmcnt(0)")
if EARLY:
    a("s_cmp_lg_u32 s10, 0")
    a("s_cbranch_scc1 L_e2")
    a("s_waitcnt vmcnt(0)")
    a.label("L_e2")
for i in range(4):
    reg = WQR[i]
    for r in range(4):
        a(f"v_lshlrev_b32 v{TT0}, 16, v{reg+r}")
        a(f"v_and_b32 v{TT1}, 0xffff0000, v{reg+r}")
        a(f"v_fmac_f32 v{QA+2*r}, v{TT0}, v{XQ+i}")
        a(f"v_fmac_f32 v{QA+2*r+1}, v{TT1}, v{XQ+i}")
a(f"v_mul_u32_u24 v{TT0}, 768, v{RG}")
a(f"v_lshlrev_b32 v{TT1}, 5, v{C24}")
a(f"v_add_u32 v{TT0}, v{TT0}, v{TT1}")
a("v_cmp_gt_u32 vcc, 480, v0")
a("s_and_saveexec_b64 s[92:93], vcc")
a(f"ds_write_b128 v{TT0}, v[{QA}:{QA+3}] offset:{L_RED}")
a(f"ds_write_b128 v{TT0}, v[{QA+4}:{QA+7}] offset:{L_RED+16}")
a("s_or_b64 exec, exec, s[92:93]")
reg = WQR[4]
for r in range(4):
    a(f"v_lshlrev_b32 v{TT0}, 16, v{reg+r}")
    a(f"v_and_b32 v{TT1}, 0xffff0000, v{reg+r}")
    a(f"v_mul_f32 v{QA+2*r}, v{TT0}, v{XQ+4}")
    a(f"v_mul_f32 v{QA+2*r+1}, v{TT1}, v{XQ+4}")
a(f"v_mul_u32_u24 v{TT0}, 48, v{RG6A}")
a(f"v_lshlrev_b32 v{TT1}, 5, v{C6}")
a(f"v_add_u32 v{TT0}, v{TT0}, v{TT1}")
a("v_cmp_gt_u32 vcc, 480, v0")
a("s_and_saveexec_b64 s[92:93], vcc")
a(f"ds_write_b128 v{TT0}, v[{QA}:{QA+3}] offset:{L_RED+15360}")
a(f"ds_write_b128 v{TT0}, v[{QA+4}:{QA+7}] offset:{L_RED+15360+16}")
a("s_or_b64 exec, exec, s[92:93]")
a("s_waitcnt lgkmcnt(0)")
a("s_barrier")
a("s_cmp_eq_u32 s10, 0")
a("s_cbranch_scc1 L_chain")
HOLD = int(os.environ.get("HOLD", "0"))
if HOLD:
    a("s_barrier")
prefetch_all(not EARLY)
a("s_branch L_chain_done")
a.label("L_chain")
FR = WQR[5]
SUM = ACC
a("s_lshl_b32 s15, s11, 2")
a(f"v_mov_b32 v{FR+26}, s15")
a("s_lshl_b32 s15, s12, 2")
a("s_add_u32 s15, s15, 128")
a(f"v_mov_b32 v{FR+27}, s15")
a(f"v_lshlrev_b32 v{TT1}, 4, v1")
a("v_cmp_gt_u32 vcc, 48, v1")
a("s_and_saveexec_b64 s[92:93], vcc")
for blk in range(4):
    for r in range(5):
        a(f"ds_read_b128 v[{FR+4*r}:{FR+4*r+3}], v{TT1} offset:{L_RED + (blk*5+r)*768}")
    a("s_waitcnt lgkmcnt(0)")
    for r in range(5):
        for e in range(4):
            if blk == 0 and r == 0:
                a(f"v_mov_b32 v{SUM+e}, v{FR+e}")
            else:
                a(f"v_add_f32 v{SUM+e}, v{SUM+e}, v{FR+4*r+e}")
a("s_mov_b64 exec, -1")
a("v_cmp_le_u32 vcc, 48, v1")
a("s_and_saveexec_b64 s[92:93], vcc")
a("v_cmp_gt_u32 vcc, 60, v1")
a("s_and_b64 exec, exec, vcc")
for blk in range(16):
    for r in range(5):
        a(f"ds_read_b128 v[{FR+4*r}:{FR+4*r+3}], v{TT1} offset:{L_RED + 15360 - 768 + (blk*5+r)*192}")
    a("s_waitcnt lgkmcnt(0)")
    for r in range(5):
        for e in range(4):
            if blk == 0 and r == 0:
                a(f"v_mov_b32 v{SUM+e}, v{FR+e}")
            else:
                a(f"v_add_f32 v{SUM+e}, v{SUM+e}, v{FR+4*r+e}")
a("s_mov_b64 exec, -1")
for e in range(4):
    a(f"v_mov_b32 v{FR+16+e}, -1")
a("s_lshl_b32 s14, s2, 10")
a(f"s_add_u32 s14, s14, {WS_PART}")
a("v_cmp_gt_u32 vcc, 49, v1")
a("s_and_saveexec_b64 s[92:93], vcc")
a(f"buffer_store_dwordx4 v[{FR+16}:{FR+19}], v{TT1}, s[24:27], s14 offen sc1")
a("s_mov_b64 exec, -1")
a("s_mul_i32 s14, s12, 20480")
a("s_mul_i32 s15, s11, 640")
a("s_add_u32 s14, s14, s15")
a(f"s_add_u32 s14, s14, {WS_OUTP}")
a("v_cmp_gt_u32 vcc, 40, v1")
a("s_and_saveexec_b64 s[92:93], vcc")
a(f"buffer_store_dwordx4 v[{FR+16}:{FR+19}], v{TT1}, s[24:27], s14 offen sc1")
a("s_mov_b64 exec, -1")
a("s_mov_b32 s94, 0")
a.label("L_flag")
a(f"buffer_load_dword v{FR+24}, v{FR+26}, s[60:63], 0 offen sc1")
a(f"buffer_load_dword v{FR+25}, v{FR+27}, s[60:63], 0 offen sc1")
a("s_waitcnt vmcnt(0)")
a(f"v_min_u32 v{FR+24}, v{FR+24}, v{FR+25}")
a("s_nop 0")
a(f"v_readfirstlane_b32 s15, v{FR+24}")
a("s_nop 3")
a("s_cmp_lg_u32 s15, 0")
a("s_cbranch_scc1 L_flag_ok")
a("s_sleep 8")
a("s_add_u32 s94, s94, 1")
a("s_cmp_lt_u32 s94, 0x100000")
a("s_cbranch_scc1 L_flag")
a.label("L_flag_ok")
a("v_cmp_gt_u32 vcc, 60, v1")
a("s_and_saveexec_b64 s[92:93], vcc")
a("s_lshl_b32 s14, s2, 10")
a(f"s_add_u32 s14, s14, {WS_QP}")
a(f"buffer_store_dwordx4 v[{SUM}:{SUM+3}], v{TT1}, s[24:27], s14 offen sc1")
a("s_mov_b64 exec, -1")
a(f"v_subrev_u32 v{FR+20}, 48, v1")
a(f"v_lshlrev_b32 v{FR+20}, 3, v{FR+20}")
a(f"buffer_load_dwordx2 v[{FR+22}:{FR+23}], v{FR+20}, s[48:51], s95 offen")
G = VBUF[0]
a("v_cmp_gt_u32 vcc, 60, v1")
a("s_and_saveexec_b64 s[92:93], vcc")
a("s_lshl_b32 s15, s11, 13")
a(f"s_add_u32 s15, s15, {WS_QP}")
a("s_mov_b32 s94, 0")
a.label("L_qpoll")
a("s_mov_b32 s14, s15")
for c in range(NCHUNK):
    if c and c % 4 == 0:
        a("s_add_u32 s14, s14, 4096")
    a(f"buffer_load_dwordx4 v[{G+4*c}:{G+4*c+3}], v{TT1}, s[24:27], s14 offen offset:{1024*(c%4)} sc1")
a("s_waitcnt vmcnt(0)")
a(f"v_max_u32 v{FR+24}, v{G}, v{G+1}")
for i in range(2, 32):
    a(f"v_max_u32 v{FR+24}, v{FR+24}, v{G+i}")
a(f"v_cmp_eq_u32 vcc, -1, v{FR+24}")
a("s_cbranch_vccz L_qpoll_done")
a("s_sleep 2")
a("s_add_u32 s94, s94, 1")
a("s_cmp_lt_u32 s94, 0x100000")
a("s_cbranch_scc1 L_qpoll")
a.label("L_qpoll_done")
for e in range(4):
    a(f"v_mov_b32 v{SUM+e}, v{G+e}")
    for c in range(1, NCHUNK):
        a(f"v_add_f32 v{SUM+e}, v{SUM+e}, v{G+4*c+e}")
a(f"v_cvt_pk_bf16_f32 v{FR}, v{SUM}, v{SUM+1}")
a(f"v_cvt_pk_bf16_f32 v{FR+1}, v{SUM+2}, v{SUM+3}")
a(f"v_lshlrev_b32 v{FR+2}, 3, v1")
a("v_cmp_gt_u32 vcc, 48, v1")
a("s_and_saveexec_b64 s[100:101], vcc")
a(f"ds_write_b64 v{FR+2}, v[{FR}:{FR+1}] offset:{L_Q}")
a("s_mov_b64 exec, s[100:101]")
a(f"v_lshlrev_b32 v{SUM}, 16, v{FR}")
a(f"v_and_b32 v{SUM+1}, 0xffff0000, v{FR}")
a(f"v_lshlrev_b32 v{SUM+2}, 16, v{FR+1}")
a(f"v_and_b32 v{SUM+3}, 0xffff0000, v{FR+1}")
a(f"v_lshlrev_b32 v{FR+4}, 16, v{FR+22}")
a(f"v_and_b32 v{FR+5}, 0xffff0000, v{FR+22}")
a(f"v_lshlrev_b32 v{FR+6}, 16, v{FR+23}")
a(f"v_and_b32 v{FR+7}, 0xffff0000, v{FR+23}")
for e in range(4):
    x = SUM + e
    t = FR + 8 + e
    a(f"v_add_f32 v{x}, v{x}, v{FR+4+e}")
    rbf(a, x)
    a(f"v_mul_f32 v{t}, v{x}, v{x}")
    a(f"v_mul_f32 v{t}, {f32(0.044715)}, v{t}")
    a(f"v_add_f32 v{t}, 1.0, v{t}")
    a(f"v_mul_f32 v{t}, v{t}, v{x}")
    a(f"v_mul_f32 v{t}, {f32(-2.0*0.7978845608028654*LOG2E)}, v{t}")
    a(f"v_exp_f32 v{t}, v{t}")
    a("s_nop 1")
    a(f"v_add_f32 v{t}, 1.0, v{t}")
    a(f"v_rcp_f32 v{t}, v{t}")
    a("s_nop 1")
    a(f"v_mul_f32 v{x}, v{x}, v{t}")
    rbf(a, x)
a("v_cmp_le_u32 vcc, 48, v1")
a("s_and_b64 exec, exec, vcc")
a(f"v_lshlrev_b32 v{FR+20}, 1, v{FR+20}")
a(f"ds_write_b128 v{FR+20}, v[{SUM}:{SUM+3}] offset:{L_H}")
a("s_mov_b64 exec, -1")
a("s_waitcnt lgkmcnt(0)")
a("s_barrier")
stamp(2)
prefetch_all()
a("s_branch L_chain_done2")
a.label("L_chain_done")
a("s_barrier")
a.label("L_chain_done2")
for j in range(6):
    a(f"ds_read_b128 v[{Q+4*j}:{Q+4*j+3}], v3 offset:{L_Q+64*j}")
for k in range(2):
    a(f"v_mov_b32 v{AT[k]}, 1")
a("v_cmp_eq_u32 vcc, 0, v1")
a("s_and_saveexec_b64 s[92:93], vcc")
a(f"buffer_atomic_add v{AT[1]}, off, s[24:27], s96 sc0")
a(f"buffer_atomic_add v{AT[0]}, off, s[24:27], s96 sc0")
a("s_or_b64 exec, exec, s[92:93]")
a("s_waitcnt lgkmcnt(0)")
a("v_cmp_le_u32 vcc, 24, v1")
a("v_mov_b32 v5, 0")
a(f"v_mov_b32 v{T}, 4")
a("s_nop 1")
a(f"v_cndmask_b32 v5, v5, v{T}, vcc")
for j in range(8):
    a(f"v_add_u32 v{BP+j}, {8*j}, v5")
    a(f"v_mov_b32 v{ACC+j}, 0")
a(f"v_mov_b32 v{M}, 0xff800000")
a(f"v_mov_b32 v{L}, 0")
a(f"v_mul_u32_u24 v{T}, 205, v0")
a(f"v_lshrrev_b32 v{RG}, 11, v{T}")
a(f"v_mul_u32_u24 v{T}, 10, v{RG}")
a(f"v_sub_u32 v{C24}, v0, v{T}")
a(f"v_mul_u32_u24 v7, 1280, v{RG}")
a(f"v_lshlrev_b32 v{T}, 4, v{C24}")
a(f"v_add_u32 v7, v7, v{T}")
a(f"v_mov_b32 v{T}, 0x40000000")
a("v_cmp_gt_u32 vcc, 480, v0")
a("s_nop 1")
a(f"v_cndmask_b32 v7, v{T}, v7, vcc")
KLA, VLA = WQR[0], WQR[0] + 1
a("s_mul_i32 s14, s10, 12288")
a(f"s_add_u32 s14, s14, {L_T2}")
a(f"v_add_u32 v{KLA}, s14, v2")
a(f"v_add_u32 v{VLA}, s14, v{FLATV}")

def mfma(buf):
    for j in range(6):
        c = "0" if j == 0 else f"v[{D}:{D+3}]"
        a(f"v_mfma_f32_16x16x32_bf16 v[{D}:{D+3}], v[{Q+4*j}:{Q+4*j+3}], v[{KBUF[buf]+4*j}:{KBUF[buf]+4*j+3}], {c}")

def grab(k):
    a(f"v_mov_b32 v{AT[k]}, 1")
    a("v_cmp_eq_u32 vcc, 0, v1")
    a("s_and_saveexec_b64 s[92:93], vcc")
    a(f"buffer_atomic_add v{AT[k]}, off, s[24:27], s96 sc0")
    a("s_or_b64 exec, exec, s[92:93]")

def mid(buf, vwait):
    a("s_nop 8")
    a(f"v_cvt_pk_bf16_f32 v{T}, v{D}, v{D}")
    a(f"v_lshlrev_b32 v{T}, 16, v{T}")
    a(f"v_mul_f32 v{T}, {f32(192 ** -0.5)}, v{T}")
    rbf(a, T)
    a(f"v_mul_f32 v{T}, {f32(LOG2E)}, v{T}")
    a("s_nop 1")
    a(f"v_max_f32_dpp v{T+1}, v{T}, v{T} row_ror:8 row_mask:0xf bank_mask:0xf")
    a("s_nop 1")
    a(f"v_max_f32_dpp v{T+1}, v{T+1}, v{T+1} row_ror:4 row_mask:0xf bank_mask:0xf")
    a("s_nop 1")
    a(f"v_max_f32_dpp v{T+1}, v{T+1}, v{T+1} row_ror:2 row_mask:0xf bank_mask:0xf")
    a("s_nop 1")
    a(f"v_max_f32_dpp v{T+1}, v{T+1}, v{T+1} row_ror:1 row_mask:0xf bank_mask:0xf")
    a(f"v_max_f32 v{T+1}, v{T+1}, v{M}")
    a(f"v_sub_f32 v{T+2}, v{M}, v{T+1}")
    a(f"v_sub_f32 v{T+3}, v{T}, v{T+1}")
    a(f"v_exp_f32 v{T+2}, v{T+2}")
    a(f"v_exp_f32 v{T+3}, v{T+3}")
    a(f"v_mov_b32 v{M}, v{T+1}")
    a(f"v_fma_f32 v{L}, v{L}, v{T+2}, v{T+3}")
    for j in range(8):
        a(f"ds_bpermute_b32 v{P+j}, v{BP+j}, v{T+3}")
    for j in range(8):
        a(f"v_mul_f32 v{ACC+j}, v{ACC+j}, v{T+2}")
    a("s_waitcnt lgkmcnt(0)")
    for j in range(8):
        w = vwait(j)
        if w:
            a(w)
        for r in range(4):
            wv = VBUF[buf] + 4 * j + r
            a(f"v_lshlrev_b32 v{T+4}, 16, v{wv}")
            a(f"v_and_b32 v{T+5}, 0xffff0000, v{wv}")
            a(f"v_fmac_f32 v{ACC+2*r}, v{T+4}, v{P+j}")
            a(f"v_fmac_f32 v{ACC+2*r+1}, v{T+5}, v{P+j}")

_idxn = [0]
def idx_to_off(k, sreg):
    n = _idxn[0]; _idxn[0] += 1
    a(f"v_readfirstlane_b32 s{sreg}, v{AT[k]}")
    a("s_nop 3")
    a(f"s_cmp_ge_u32 s{sreg}, 0x1000")
    a(f"s_cbranch_scc1 L_idx{n}")
    a("s_waitcnt vmcnt(0)")
    a(f"v_readfirstlane_b32 s{sreg}, v{AT[k]}")
    a("s_nop 3")
    a.label(f"L_idx{n}")
    a(f"s_sub_u32 s{sreg}, s{sreg}, {0x1000 - NSTAT}")

a("s_waitcnt vmcnt(0)")
mfma(0)
EXPG = os.environ.get("EXPG", "0")
if EXPG == "1":
    a(f"s_add_u32 s91, s90, {128*16*384}")
    load_k(0, 91)
    mid(0, lambda j: None)
    load_v(0, 91)
    a("s_waitcnt vmcnt(0)")
else:
    for j in range(6):
        a(f"ds_read_b128 v[{KBUF[0]+4*j}:{KBUF[0]+4*j+3}], v{KLA} offset:{64*j}")
    mid(0, lambda j: None)
    for j in range(8):
        a(f"ds_read_b128 v[{VBUF[0]+4*j}:{VBUF[0]+4*j+3}], v{VLA} offset:{6144+768*j}")
mfma(1)
idx_to_off(1, 91)
a(f"s_mul_i32 s91, s91, {16*384}")
load_k(1, 91)
grab(1)
mid(1, lambda j: None)
load_v(1, 91)
a("s_waitcnt lgkmcnt(0)")
mfma(0)
idx_to_off(0, 91)
a(f"s_mul_i32 s91, s91, {16*384}")
load_k(0, 91)
grab(0)
mid(0, lambda j: None)
load_v(0, 91)
def tail_loads(buf):
    kb = KBUF[buf]
    a(f"s_mul_i32 s14, s11, {192*1280}")
    a("s_mul_i32 s15, s12, 160")
    a("s_add_u32 s14, s14, s15")
    for i in range(4):
        a(f"buffer_load_dwordx4 v[{kb+4*i}:{kb+4*i+3}], v7, s[40:43], s14 offen")
        a(f"s_add_u32 s14, s14, {48*1280}")
    a(f"s_mul_i32 s14, s11, {48*1280}")
    a("s_add_u32 s14, s14, s15")
    a(f"buffer_load_dwordx4 v[{kb+16}:{kb+19}], v7, s[44:47], s14 offen")

a.label("L_loop")
for buf in (1, 0):
    a("s_waitcnt vmcnt(22)")
    mfma(buf)
    idx_to_off(buf, 91)
    a(f"s_cmp_ge_u32 s91, {NT_HEAD}")
    a(f"s_cbranch_scc1 L_drain{buf}")
    a(f"s_mul_i32 s91, s91, {16*384}")
    load_k(buf, 91)
    grab(buf)
    mid(buf, lambda j: f"s_waitcnt vmcnt({20 + 7 - j})")
    load_v(buf, 91)
a("s_branch L_loop")
for buf in (1, 0):
    other = 1 - buf
    a.label(f"L_drain{buf}")
    tail_loads(buf)
    mid(buf, lambda j: f"s_waitcnt vmcnt({19 + 7 - j})")
    a("s_waitcnt vmcnt(13)")
    mfma(other)
    mid(other, lambda j: f"s_waitcnt vmcnt({5 + 7 - j})")
    a(f"s_mov_b32 s94, {KBUF[buf]}")
    a(f"s_branch L_fin{buf}")
stamp_done = False

def finish(buf):
    KB = KBUF[buf]
    R = VBUF[0]
    sfx = str(buf)
    if buf == 1:
        stamp(3)
    a("s_nop 1")
    for sh in (8, 4, 2, 1):
        a(f"v_add_f32_dpp v{L}, v{L}, v{L} row_ror:{sh} row_mask:0xf bank_mask:0xf")
        a("s_nop 1")
    a("s_lshl_b32 s14, s10, 2")
    a(f"v_mov_b32 v{T}, s14")
    a(f"ds_write_b32 v{T}, v{M} offset:{L_WM}")
    a(f"ds_write_b32 v{T}, v{L} offset:{L_WM+64}")
    a("s_mul_i32 s14, s10, 1536")
    a(f"v_lshlrev_b32 v{T}, 5, v1")
    a(f"v_add_u32 v{T}, s14, v{T}")
    a("v_cmp_gt_u32 vcc, 48, v1")
    a("s_and_saveexec_b64 s[92:93], vcc")
    a(f"ds_write_b128 v{T}, v[{ACC}:{ACC+3}] offset:{L_ACC}")
    a(f"ds_write_b128 v{T}, v[{ACC+4}:{ACC+7}] offset:{L_ACC+16}")
    a("s_or_b64 exec, exec, s[92:93]")
    a("s_waitcnt vmcnt(0)")
    for i in range(20):
        a(f"v_mov_b32 v{WQR[1]+i}, v{KB+i}")
    if buf == 0:
        a("s_branch L_common")

a.label("L_fin0")
finish(0)
a.label("L_fin1")
finish(1)
a.label("L_common")
KB = WQR[1]
R = VBUF[0]
a("s_waitcnt lgkmcnt(0)")
a("s_barrier")
a("v_cmp_gt_u32 vcc, 192, v0")
a("s_and_saveexec_b64 s[92:93], vcc")
a("s_cbranch_execz L_rec_done")
a(f"v_mov_b32 v{T}, 0")
a(f"v_lshlrev_b32 v{T+1}, 2, v0")
for w in range(NW):
    a(f"ds_read_b32 v{R+w}, v{T} offset:{L_WM+4*w}")
    a(f"ds_read_b32 v{R+8+w}, v{T} offset:{L_WM+64+4*w}")
    a(f"ds_read_b32 v{R+16+2*w}, v{T+1} offset:{L_ACC+1536*w}")
    a(f"ds_read_b32 v{R+17+2*w}, v{T+1} offset:{L_ACC+1536*w+768}")
a("s_waitcnt lgkmcnt(0)")
a(f"v_mov_b32 v{T+2}, v{R}")
for w in range(1, NW):
    a(f"v_max_f32 v{T+2}, v{T+2}, v{R+w}")
a(f"v_mov_b32 v{T+3}, 0")
a(f"v_mov_b32 v{T+4}, 0")
for w in range(NW):
    a(f"v_sub_f32 v{T+5}, v{R+w}, v{T+2}")
    a(f"v_exp_f32 v{T+5}, v{T+5}")
    a(f"v_add_f32 v{P}, v{R+16+2*w}, v{R+17+2*w}")
    a(f"v_fmac_f32 v{T+3}, v{T+5}, v{R+8+w}")
    a(f"v_fmac_f32 v{T+4}, v{T+5}, v{P}")
a("s_lshl_b32 s14, s2, 10")
a(f"s_add_u32 s14, s14, {WS_PART}")
a(f"buffer_store_dword v{T+4}, v{T+1}, s[24:27], s14 offen sc1")
a("v_cmp_eq_u32 vcc, 0, v0")
a("s_and_saveexec_b64 s[100:101], vcc")
a(f"buffer_store_dword v{T+2}, v{T+1}, s[24:27], s14 offen offset:768 sc1")
a(f"buffer_store_dword v{T+3}, v{T+1}, s[24:27], s14 offen offset:772 sc1")
a("s_mov_b64 exec, s[100:101]")
stamp(4)
a("s_lshl_b32 s15, s11, 13")
a(f"s_add_u32 s15, s15, {WS_PART}")
a(f"v_mov_b32 v{T}, 0")
a("s_mov_b32 s94, 0")
a.label("L_poll")
a("s_mov_b32 s14, s15")
for c in range(NCHUNK):
    if c and c % 4 == 0:
        a("s_add_u32 s14, s14, 4096")
    a(f"buffer_load_dword v{R+c}, v{T+1}, s[24:27], s14 offen offset:{1024*(c%4)} sc1")
    a(f"buffer_load_dwordx2 v[{R+8+2*c}:{R+9+2*c}], v{T}, s[24:27], s14 offen offset:{1024*(c%4)+768} sc1")
a("s_waitcnt vmcnt(0)")
a(f"v_and_b32 v{T+2}, v{R}, v{R+1}")
for i in range(2, 24):
    a(f"v_max_u32 v{T+2}, v{T+2}, v{R+i}") if False else None
a(f"v_max_u32 v{T+2}, v{R}, v{R+1}")
for i in range(2, 24):
    a(f"v_max_u32 v{T+2}, v{T+2}, v{R+i}")
a(f"v_cmp_eq_u32 vcc, -1, v{T+2}")
a("s_cbranch_vccz L_poll_done")
a("s_sleep 1")
a("s_add_u32 s94, s94, 1")
a("s_cmp_lt_u32 s94, 0x100000")
a("s_cbranch_scc1 L_poll")
a.label("L_poll_done")
stamp(5)
a(f"v_mov_b32 v{T+2}, v{R+8}")
for c in range(1, NCHUNK):
    a(f"v_max_f32 v{T+2}, v{T+2}, v{R+8+2*c}")
a(f"v_mov_b32 v{T+3}, 0")
a(f"v_mov_b32 v{T+4}, 0")
for c in range(NCHUNK):
    a(f"v_sub_f32 v{T+5}, v{R+8+2*c}, v{T+2}")
    a(f"v_exp_f32 v{T+5}, v{T+5}")
    a("s_nop 0")
    a(f"v_fmac_f32 v{T+3}, v{T+5}, v{R+9+2*c}")
    a(f"v_fmac_f32 v{T+4}, v{T+5}, v{R+c}")
a(f"v_rcp_f32 v{T+5}, v{T+3}")
a("s_nop 1")
a(f"v_fma_f32 v{T+2}, -v{T+3}, v{T+5}, 1.0")
a(f"v_fmac_f32 v{T+5}, v{T+2}, v{T+5}")
a(f"v_mul_f32 v{T+4}, v{T+4}, v{T+5}")
rbf(a, T + 4)
a(f"ds_write_b32 v{T+1}, v{T+4} offset:{L_O}")
a.label("L_rec_done")
a("s_mov_b64 exec, -1")
a("s_waitcnt lgkmcnt(0)")
a("s_barrier")
a(f"v_lshlrev_b32 v5, 2, v{RG}")
for i in range(4):
    a(f"ds_read_b32 v{R+i}, v5 offset:{L_O + 48*4*i}")
a(f"ds_read_b32 v{R+4}, v5 offset:{L_H}")
for r in range(8):
    a(f"v_mov_b32 v{ACC+r}, 0")
a("s_waitcnt lgkmcnt(0)")
for i in range(4):
    for r in range(4):
        a(f"v_lshlrev_b32 v{T+4}, 16, v{KB+4*i+r}")
        a(f"v_and_b32 v{T+5}, 0xffff0000, v{KB+4*i+r}")
        a(f"v_fmac_f32 v{ACC+2*r}, v{T+4}, v{R+i}")
        a(f"v_fmac_f32 v{ACC+2*r+1}, v{T+5}, v{R+i}")
for r in range(4):
    a(f"v_lshlrev_b32 v{T+4}, 16, v{KB+16+r}")
    a(f"v_and_b32 v{T+5}, 0xffff0000, v{KB+16+r}")
    a(f"v_mul_f32 v{P+2*r}, v{T+4}, v{R+4}")
    a(f"v_mul_f32 v{P+2*r+1}, v{T+5}, v{R+4}")
a(f"v_mul_u32_u24 v5, 640, v{RG}")
a(f"v_lshlrev_b32 v{T}, 5, v{C24}")
a(f"v_add_u32 v5, v5, v{T}")
a("v_cmp_gt_u32 vcc, 480, v0")
a("s_and_saveexec_b64 s[92:93], vcc")
a(f"ds_write_b128 v5, v[{ACC}:{ACC+3}] offset:{L_RED}")
a(f"ds_write_b128 v5, v[{ACC+4}:{ACC+7}] offset:{L_RED+16}")
a(f"ds_write_b128 v5, v[{P}:{P+3}] offset:{L_RED+320}")
a(f"ds_write_b128 v5, v[{P+4}:{P+7}] offset:{L_RED+336}")
a("s_or_b64 exec, exec, s[92:93]")
a("s_waitcnt lgkmcnt(0)")
a("s_barrier")
a("v_cmp_gt_u32 vcc, 160, v0")
a("s_and_saveexec_b64 s[92:93], vcc")
a("s_cbranch_execz L_outp_done")
a("v_lshlrev_b32 v5, 2, v0")
for blk in range(2):
    for r in range(24):
        a(f"ds_read_b32 v{R+r}, v5 offset:{L_RED + (blk*24+r)*640}")
    a("s_waitcnt lgkmcnt(0)")
    for r in range(24):
        if blk == 0 and r == 0:
            a(f"v_mov_b32 v{T}, v{R}")
        else:
            a(f"v_add_f32 v{T}, v{T}, v{R+r}")
a("s_mul_i32 s14, s12, 20480")
a("s_mul_i32 s15, s11, 640")
a("s_add_u32 s14, s14, s15")
a(f"s_add_u32 s14, s14, {WS_OUTP}")
a(f"buffer_store_dword v{T}, v5, s[24:27], s14 offen sc1")
a.label("L_outp_done")
a("s_mov_b64 exec, -1")
stamp(6)
a("s_cmp_lg_u32 s11, 0")
a("s_cbranch_scc1 L_done")
a("v_cmp_gt_u32 vcc, 160, v0")
a("s_and_saveexec_b64 s[92:93], vcc")
a("v_lshlrev_b32 v5, 2, v0")
a("s_mul_i32 s15, s12, 20480")
a(f"s_add_u32 s15, s15, {WS_OUTP}")
F = KBUF[0]
a(f"v_subrev_u32 v{T+1}, 80, v0")
a("v_cmp_gt_u32 vcc, 80, v0")
a("s_nop 1")
a(f"v_cndmask_b32 v{T+1}, v{T+1}, v0, vcc")
a(f"v_lshlrev_b32 v{T+1}, 1, v{T+1}")
a("s_mul_i32 s14, s12, 160")
a(f"buffer_load_ushort v{P}, v{T+1}, s[36:39], s14 offen")
a(f"buffer_load_ushort v{P+1}, v{T+1}, s[52:55], s14 offen")
a("s_cbranch_execz L_fpoll_done")
a("s_mov_b32 s94, 0")
a.label("L_fpoll")
a("s_mov_b32 s14, s15")
for hh in range(32):
    if hh and hh % 4 == 0:
        a("s_add_u32 s14, s14, 2560")
    a(f"buffer_load_dword v{F+hh}, v5, s[24:27], s14 offen offset:{640*(hh%4)} sc1")
a("s_waitcnt vmcnt(0)")
a(f"v_max_u32 v{T+2}, v{F}, v{F+1}")
for hh in range(2, 32):
    a(f"v_max_u32 v{T+2}, v{T+2}, v{F+hh}")
a(f"v_cmp_eq_u32 vcc, -1, v{T+2}")
a("s_cbranch_vccz L_fpoll_done")
a("s_sleep 1")
a("s_add_u32 s94, s94, 1")
a("s_cmp_lt_u32 s94, 0x100000")
a("s_cbranch_scc1 L_fpoll")
a.label("L_fpoll_done")
a("s_mul_i32 s15, s12, 160")
a("s_waitcnt vmcnt(0)")
a(f"v_mov_b32 v{T+2}, v{P}")
a(f"v_mov_b32 v{T+3}, v{P+1}")
a(f"v_mov_b32 v{T}, v{F}")
for hh in range(1, 32):
    a(f"v_add_f32 v{T}, v{T}, v{F+hh}")
rbf(a, T)
a(f"v_lshlrev_b32 v{T+3}, 16, v{T+3}")
a(f"v_add_f32 v{T+4}, v{T}, v{T+3}")
rbf(a, T + 4)
a(f"v_mul_f32 v{T+5}, {f32(-LOG2E)}, v{T+4}")
a(f"v_exp_f32 v{T+5}, v{T+5}")
a("s_nop 1")
a(f"v_add_f32 v{T+5}, 1.0, v{T+5}")
a(f"v_rcp_f32 v{T+5}, v{T+5}")
a("s_nop 1")
a(f"v_mul_f32 v{T+4}, v{T+4}, v{T+5}")
rbf(a, T + 4)
a(f"ds_write_b32 v5, v{T+4} offset:{L_RED}")
a("s_or_b64 exec, exec, s[92:93]")
a("s_waitcnt lgkmcnt(0)")
a("s_barrier")
a("v_cmp_gt_u32 vcc, 80, v0")
a("s_and_saveexec_b64 s[92:93], vcc")
a("s_cbranch_execz L_done")
a(f"ds_read_b32 v{T+4}, v5 offset:{L_RED+320}")
a("s_waitcnt lgkmcnt(0)")
a(f"v_mul_f32 v{T}, v{T}, v{T+4}")
rbf(a, T)
a(f"v_lshlrev_b32 v{T+2}, 16, v{T+2}")
a(f"v_add_f32 v{T}, v{T}, v{T+2}")
a(f"v_cvt_pk_bf16_f32 v{T}, v{T}, v{T}")
a(f"buffer_store_short v{T}, v{T+1}, s[56:59], s15 offen")
a("s_mov_b64 exec, -1")
stamp(7)
a.label("L_done")
a("s_endpgm")

out += a.text()
nv = 254 if DIAG else NV
out += f""".section .rodata,"a"
.p2align 6
.amdhsa_kernel {KN}
  .amdhsa_next_free_vgpr {nv}
  .amdhsa_next_free_sgpr 102
  .amdhsa_accum_offset {(nv+3)//4*4}
  .amdhsa_group_segment_fixed_size 0
  .amdhsa_kernarg_size 104
  .amdhsa_user_sgpr_count 2
  .amdhsa_user_sgpr_kernarg_segment_ptr 1
  .amdhsa_system_sgpr_workgroup_id_x 1
.end_amdhsa_kernel
"""
open(OUT, "w").write(out)
print("wrote", OUT, len(out), "vgpr", nv, "lds", LDS_BYTES)
```

```python
import struct, sys, os, re, math

NAME = "recurrent_scan__gqa_block_cached__mixer_channel_mlp__decode"
OUT = os.environ.get("OUT", "cdna_kernels/%s.s" % NAME)
DIAG = os.environ.get("DIAG", "0") == "1"
KVF = os.environ.get("KVF", "sc1 nt")

NW = 8
NCHUNK = 8
SK = 8192
NT_HEAD = SK // 16
NSTAT = 3 * NW * NCHUNK

WS_CTR = 0
WS_CG = 32 * 256
WS_PART = 65536
WS_OUTP = WS_PART + 32 * NCHUNK * 1024
WS_QP = WS_OUTP + 8 * 32 * 640
WS_SIZE = 402653184

KA_X, KA_K, KA_V, KA_WQ, KA_WO, KA_BX, KA_W1, KA_B1, KA_W2, KA_B2, KA_OUT, KA_DBG, KA_WS = [8 * i for i in range(13)]

L_XN = 0
L_Y = 2560
L_RED = 5120
L_ACC = 5120
L_Q = 35840
L_H = 36224
L_WM = 36416
L_O = 36544
L_FLAG = 37312
L_T2 = 37376
LDS_BYTES = L_T2 + NW * 12288

def f32(x):
    return "0x%08x" % struct.unpack("<I", struct.pack("<f", x))[0]
LOG2E = 1.4426950408889634
for t in range(480):
    assert (t * 171) >> 12 == t // 24 and (t * 171) >> 10 == t // 6 and (t * 205) >> 11 == t // 10

class A:
    def __init__(self):
        self.l = []
    def __call__(self, s):
        for line in s.split("\n"):
            line = line.strip()
            m = re.search(r"offset:(\d+)", line)
            if m and line.startswith("buffer_"):
                assert int(m.group(1)) <= 4095, line
            if m and line.startswith("ds_"):
                assert int(m.group(1)) <= 65535, line
            self.l.append("    " + line)
    def label(self, s):
        self.l.append(s + ":")
    def text(self):
        return "\n".join(self.l) + "\n"

def srd(a, d, b, nbytes, add=None):
    if add is None:
        a(f"s_mov_b32 s{d}, s{b}")
        a(f"s_and_b32 s{d+1}, s{b+1}, 0xffff")
    else:
        a(f"s_add_u32 s{d}, s{b}, {add}")
        a(f"s_addc_u32 s{d+1}, s{b+1}, 0")
        a(f"s_and_b32 s{d+1}, s{d+1}, 0xffff")
    a(f"s_mov_b32 s{d+2}, {nbytes}")
    a(f"s_mov_b32 s{d+3}, 0x00020000")

def rbf(a, v):
    a(f"v_cvt_pk_bf16_f32 v{v}, v{v}, v{v}")
    a(f"v_lshlrev_b32 v{v}, 16, v{v}")

def wave_sum(a, v, s):
    a("s_nop 1")
    for sh in (1, 2, 4, 8):
        a(f"v_add_f32_dpp v{v}, v{v}, v{v} row_shr:{sh} row_mask:0xf bank_mask:0xf bound_ctrl:0")
        a("s_nop 1")
    a(f"v_add_f32_dpp v{v}, v{v}, v{v} row_bcast:15 row_mask:0xa bank_mask:0xf")
    a("s_nop 1")
    a(f"v_add_f32_dpp v{v}, v{v}, v{v} row_bcast:31 row_mask:0xc bank_mask:0xf")
    a("s_nop 1")
    a(f"v_readlane_b32 s{s}, v{v}, 63")
    a("s_nop 3")

def layernorm(a, e, t0, t1, t2, s):
    a(f"v_add_f32 v{t0}, v{e}, v{e+1}")
    for i in range(2, 10):
        a(f"v_add_f32 v{t0}, v{t0}, v{e+i}")
    wave_sum(a, t0, s)
    a(f"v_mov_b32 v{t1}, s{s}")
    a(f"v_mul_f32 v{t1}, {f32(1.0/640)}, v{t1}")
    a(f"v_mov_b32 v{t0}, 0")
    for i in range(10):
        a(f"v_sub_f32 v{t2}, v{e+i}, v{t1}")
        a(f"v_fmac_f32 v{t0}, v{t2}, v{t2}")
    wave_sum(a, t0, s)
    a(f"v_mov_b32 v{t0}, s{s}")
    a(f"v_mul_f32 v{t0}, {f32(1.0/640)}, v{t0}")
    rbf(a, t0)
    rbf(a, t1)
    a(f"v_add_f32 v{t0}, {f32(1e-5)}, v{t0}")
    rbf(a, t0)
    a(f"v_sqrt_f32 v{t0}, v{t0}")
    a("s_nop 1")
    rbf(a, t0)
    a(f"v_rcp_f32 v{t2}, v{t0}")
    a("s_nop 1")
    a(f"v_fma_f32 v{t0}, -v{t0}, v{t2}, 1.0")
    a(f"v_fmac_f32 v{t2}, v{t0}, v{t2}")
    for i in range(10):
        a(f"v_sub_f32 v{e+i}, v{e+i}, v{t1}")
        rbf(a, e + i)
        a(f"v_mul_f32 v{e+i}, v{e+i}, v{t2}")
        rbf(a, e + i)

def stamp(i, wave=0):
    if not DIAG:
        return
    a(f"s_cmp_lg_u32 s10, {wave}")
    a(f"s_cbranch_scc1 L_st{i}")
    a("s_memrealtime s[4:5]")
    a("s_waitcnt lgkmcnt(0)")
    a("s_lshl_b32 s6, s2, 6")
    a(f"s_add_u32 s6, s6, {(1<<20) + 8*i}")
    a("v_mov_b32 v252, s4")
    a("v_mov_b32 v253, s5")
    a("s_mov_b64 s[4:5], exec")
    a("s_mov_b64 exec, 1")
    a("buffer_store_dwordx2 v[252:253], off, s[24:27], s6")
    a("s_mov_b64 exec, s[4:5]")
    a.label(f"L_st{i}")

a = A()
hdr = open("cdna_kernels/%s.s.ref" % NAME).read().split("\n")
comment = [l for l in hdr if l.startswith(";") and "@launch" not in l]
out = "\n".join(comment) + "\n"
out += f"; @launch grid=({32*NCHUNK},1,1) block=({64*NW},1,1) lds={LDS_BYTES}\n"
out += '.amdgcn_target "amdgcn-amd-amdhsa--gfx950"\n.text\n'
KN = NAME + "_kernel"
a(f".globl {KN}")
a(".p2align 8")
a(f".type {KN},@function")
a.label(KN)

Q = 8
KBUF = [32, 88]
VBUF = [56, 112]
ACC = 144
M, L = 152, 153
T = 154
P = 160
D = 168
BP = 172
RG, C24, HV, FLATV = 180, 181, 184, 185
AT = [182, 183]
W1V, RG6A, C6 = 186, 187, D + 3
WS0 = 188
NSLOT = 16
WQR = [WS0 + 4 * i for i in range(NSLOT)]
NV = WS0 + 4 * NSLOT
QA = ACC
XV = P
TT0, TT1 = T, T + 1

a(f"s_cmp_ge_u32 s2, {32*NCHUNK}")
a("s_cbranch_scc1 L_done")
a(f"s_load_dwordx4 s[64:67], s[0:1], {KA_X}")
a(f"s_load_dwordx4 s[68:71], s[0:1], {KA_V}")
a(f"s_load_dwordx2 s[72:73], s[0:1], {KA_WO}")
a(f"s_load_dwordx4 s[76:79], s[0:1], {KA_W1}")
a(f"s_load_dwordx4 s[80:83], s[0:1], {KA_W2}")
a(f"s_load_dwordx4 s[84:87], s[0:1], {KA_OUT}")
a(f"s_load_dwordx2 s[88:89], s[0:1], {KA_WS}")
a("v_lshrrev_b32 v1, 6, v0")
a("s_nop 0")
a("v_readfirstlane_b32 s10, v1")
a("v_and_b32 v1, 63, v0")
a("s_lshr_b32 s11, s2, 3")
a("s_and_b32 s12, s2, 7")
a("s_mul_i32 s13, s11, 3145728")
a("v_and_b32 v2, 15, v1")
a("v_mul_u32_u24 v2, 384, v2")
a("v_lshrrev_b32 v3, 4, v1")
a("v_lshlrev_b32 v3, 4, v3")
a("v_add_u32 v2, v2, v3")
a(f"v_lshlrev_b32 v{FLATV}, 4, v1")
a(f"v_add_u32 v{HV}, 4096, v{FLATV}")
a("v_mov_b32 v5, 0x40000000")
a("v_cmp_gt_u32 vcc, 48, v1")
a("s_nop 1")
a(f"v_cndmask_b32 v4, v5, v{FLATV}, vcc")
a("v_add_u32 v6, 3072, v4")
a(f"v_mul_u32_u24 v{TT0}, 171, v0")
a(f"v_lshrrev_b32 v{RG}, 12, v{TT0}")
a(f"v_mul_u32_u24 v{TT1}, 24, v{RG}")
a(f"v_sub_u32 v{C24}, v0, v{TT1}")
a(f"v_lshrrev_b32 v{TT0}, 10, v{TT0}")
a(f"v_mul_u32_u24 v{TT1}, 6, v{TT0}")
a(f"v_sub_u32 v{C6}, v0, v{TT1}")
a(f"v_mul_u32_u24 v{W1V}, 3072, v{TT0}")
a(f"v_lshlrev_b32 v{TT1}, 4, v{C6}")
a(f"v_add_u32 v{W1V}, v{W1V}, v{TT1}")
a(f"v_lshlrev_b32 v{RG6A}, 2, v{TT0}")
a("s_mov_b32 s14, 12288")
a(f"v_mul_lo_u32 v7, v{RG}, s14")
a(f"v_lshlrev_b32 v{TT1}, 4, v{C24}")
a(f"v_add_u32 v7, v7, v{TT1}")
a("v_mov_b32 v5, 0x40000000")
a("v_cmp_gt_u32 vcc, 480, v0")
a("s_nop 1")
a("v_cndmask_b32 v7, v5, v7, vcc")
a(f"v_cndmask_b32 v{W1V}, v5, v{W1V}, vcc")
a("s_lshl_b32 s90, s12, 3")
a("s_add_u32 s90, s90, s10")
a(f"s_mul_i32 s90, s90, {16*384}")
a("s_lshl_b32 s96, s11, 8")
a(f"s_add_u32 s96, s96, {WS_CTR}")
a("s_waitcnt lgkmcnt(0)")
srd(a, 36, 64, 1280)
srd(a, 16, 66, 3145728, add="s13")
srd(a, 20, 68, 3145728, add="s13")
srd(a, 28, 70, 640 * 12288)
srd(a, 32, 76, 640 * 3072)
srd(a, 24, 88, WS_SIZE)
srd(a, 60, 86, 256)
stamp(0)
XR = Q + 18
E = Q
a("v_lshlrev_b32 v5, 2, v1")
for i in range(5):
    a(f"buffer_load_dword v{XR+i}, v5, s[36:39], 0 offen offset:{256*i}")
a("s_cmp_lg_u32 s10, 0")
a("s_cbranch_scc1 L_init_done")
a(f"v_mov_b32 v{TT0}, 0")
a(f"v_lshlrev_b32 v{TT1}, 6, v1")
a("s_cmp_lg_u32 s12, 0")
a("s_cbranch_scc1 L_init_cg")
a("v_cmp_eq_u32 vcc, 0, v1")
a(f"v_mov_b32 v{TT0+3}, 0x1000")
a("s_nop 0")
a(f"v_cndmask_b32 v{TT0+3}, v{TT0}, v{TT0+3}, vcc")
a("v_cmp_gt_u32 vcc, 3, v1")
a("s_and_saveexec_b64 s[92:93], vcc")
a(f"buffer_store_dword v{TT0+3}, v{TT1}, s[24:27], s96 offen sc1")
a("s_mov_b64 exec, -1")
for e in range(4):
    a(f"v_mov_b32 v{WQR[10]+e}, -1")
a("s_lshl_b32 s14, s11, 13")
a(f"s_add_u32 s14, s14, {WS_QP}")
for c in range(NCHUNK):
    if c and c % 4 == 0:
        a("s_add_u32 s14, s14, 4096")
    a(f"buffer_store_dwordx4 v[{WQR[10]}:{WQR[10]+3}], v{FLATV}, s[24:27], s14 offen offset:{1024*(c%4)} sc1")
a("s_waitcnt vmcnt(0)")
a("s_lshl_b32 s14, s11, 2")
a(f"v_mov_b32 v{TT1}, s14")
a(f"v_mov_b32 v{TT0+2}, 1")
a("v_cmp_eq_u32 vcc, 0, v1")
a("s_and_saveexec_b64 s[92:93], vcc")
a(f"buffer_atomic_add v{TT0+2}, v{TT1}, s[60:63], 0 offen")
a("s_mov_b64 exec, -1")
a.label("L_init_cg")
a("s_cmp_lg_u32 s11, 0")
a("s_cbranch_scc1 L_init_done")
a("s_lshl_b32 s14, s12, 8")
a(f"s_add_u32 s14, s14, {WS_CG}")
a("v_cmp_eq_u32 vcc, 0, v1")
a("s_and_saveexec_b64 s[92:93], vcc")
a(f"buffer_store_dword v{TT0}, off, s[24:27], s14 sc1")
a("s_waitcnt vmcnt(0)")
a("s_lshl_b32 s14, s12, 2")
a("s_add_u32 s14, s14, 128")
a(f"v_mov_b32 v{TT1}, s14")
a(f"v_mov_b32 v{TT0+2}, 1")
a(f"buffer_atomic_add v{TT0+2}, v{TT1}, s[60:63], 0 offen")
a("s_mov_b64 exec, -1")
a.label("L_init_done")
a("s_mul_i32 s14, s11, 384")
a(f"s_mul_i32 s15, s12, {80*12288}")
a("s_add_u32 s14, s14, s15")
a("s_mul_i32 s95, s11, 96")
a(f"s_mul_i32 s15, s12, {80*3072}")
a("s_add_u32 s15, s95, s15")
for i in range(4):
    if i:
        a(f"s_add_u32 s14, s14, {20*12288}")
    a(f"buffer_load_dwordx4 v[{WQR[i]}:{WQR[i]+3}], v7, s[28:31], s14 offen")
a(f"buffer_load_dwordx4 v[{WQR[4]}:{WQR[4]+3}], v{W1V}, s[32:35], s15 offen")
def k_ins(buf, soff):
    if os.environ.get("FLATK") == "1":
        return [f"buffer_load_dwordx4 v[{KBUF[buf]+4*j}:{KBUF[buf]+4*j+3}], v{FLATV if j < 4 else HV}, s[16:19], s{soff} offen offset:{1024*(j%4)} nt" for j in range(6)]
    return [f"buffer_load_dwordx4 v[{KBUF[buf]+4*j}:{KBUF[buf]+4*j+3}], v2, s[16:19], s{soff} offen offset:{64*j} {KVF}" for j in range(6)]
def v_ins(buf, soff):
    return [f"buffer_load_dwordx4 v[{VBUF[buf]+4*j}:{VBUF[buf]+4*j+3}], v{4 if j < 4 else 6}, s[20:23], s{soff} offen offset:{768*(j%4)} {KVF}" for j in range(8)]
def load_k(buf, soff):
    for l in k_ins(buf, soff):
        a(l)
def load_v(buf, soff):
    for l in v_ins(buf, soff):
        a(l)
a(f"s_add_u32 s91, s90, {64*16*384}")
a(f"s_add_u32 s99, s90, {128*16*384}")
a("s_mul_i32 s94, s10, 12288")
a(f"s_add_u32 s98, s94, {L_T2}")
EARLY = int(os.environ.get("EARLY", "0"))
def prefetch_all(first=True):
    if first:
        load_k(0, 90)
        load_v(0, 90)
    load_k(1, 91)
    load_v(1, 91)
    for half, sr in ((0, 16), (1, 20)):
        for grp in range(2):
            a(f"s_add_u32 s94, s98, {half*6144 + grp*3072}")
            a("s_mov_b32 m0, s94")
            a(f"s_add_u32 s94, s99, {grp*3072}")
            for j in range(3):
                a(f"buffer_load_dwordx4 v{FLATV}, s[{sr}:{sr+3}], s94 offen offset:{1024*j} {KVF} lds")
srd(a, 40, 72, 6144 * 1280)
srd(a, 48, 78, 3072)
srd(a, 44, 80, 1536 * 1280)
srd(a, 52, 82, 1280)
srd(a, 56, 84, 1280)
if EARLY:
    a("s_cmp_eq_u32 s10, 0")
    a("s_cbranch_scc1 L_noearly")
    load_k(0, 90)
    load_v(0, 90)
    a("s_waitcnt vmcnt(19)")
    a("s_branch L_early_done")
    a.label("L_noearly")
    a("s_waitcnt vmcnt(5)")
    a.label("L_early_done")
else:
    a("s_waitcnt vmcnt(5)")
for i in range(5):
    a(f"v_lshlrev_b32 v{E+2*i}, 16, v{XR+i}")
    a(f"v_and_b32 v{E+2*i+1}, 0xffff0000, v{XR+i}")
t0, t1, t2 = Q + 12, Q + 13, Q + 14
layernorm(a, E, t0, t1, t2, 15)
a("v_lshlrev_b32 v5, 3, v1")
for i in range(5):
    a(f"ds_write_b64 v5, v[{E+2*i}:{E+2*i+1}] offset:{L_XN+512*i}")
layernorm(a, E, t0, t1, t2, 15)
for i in range(5):
    a(f"ds_write_b64 v5, v[{E+2*i}:{E+2*i+1}] offset:{L_Y+512*i}")
a("s_waitcnt lgkmcnt(0)")
a("s_barrier")
for r in range(8):
    a(f"v_mov_b32 v{QA+r}, 0")
a("s_mul_i32 s15, s12, 320")
a(f"v_lshlrev_b32 v5, 2, v{RG}")
a("v_add_u32 v5, s15, v5")
a(f"v_add_u32 v{TT0}, s15, v{RG6A}")
XQ = P
for i in range(4):
    a(f"ds_read_b32 v{XQ+i}, v5 offset:{L_XN + i*80}")
a(f"ds_read_b32 v{XQ+4}, v{TT0} offset:{L_Y}")
a(f"s_waitcnt vmcnt({14 if EARLY else 0}) lgkmcnt(0)")
if EARLY:
    a("s_cmp_lg_u32 s10, 0")
    a("s_cbranch_scc1 L_e2")
    a("s_waitcnt vmcnt(0)")
    a.label("L_e2")
for i in range(4):
    reg = WQR[i]
    for r in range(4):
        a(f"v_lshlrev_b32 v{TT0}, 16, v{reg+r}")
        a(f"v_and_b32 v{TT1}, 0xffff0000, v{reg+r}")
        a(f"v_fmac_f32 v{QA+2*r}, v{TT0}, v{XQ+i}")
        a(f"v_fmac_f32 v{QA+2*r+1}, v{TT1}, v{XQ+i}")
a(f"v_mul_u32_u24 v{TT0}, 768, v{RG}")
a(f"v_lshlrev_b32 v{TT1}, 5, v{C24}")
a(f"v_add_u32 v{TT0}, v{TT0}, v{TT1}")
a("v_cmp_gt_u32 vcc, 480, v0")
a("s_and_saveexec_b64 s[92:93], vcc")
a(f"ds_write_b128 v{TT0}, v[{QA}:{QA+3}] offset:{L_RED}")
a(f"ds_write_b128 v{TT0}, v[{QA+4}:{QA+7}] offset:{L_RED+16}")
a("s_or_b64 exec, exec, s[92:93]")
reg = WQR[4]
for r in range(4):
    a(f"v_lshlrev_b32 v{TT0}, 16, v{reg+r}")
    a(f"v_and_b32 v{TT1}, 0xffff0000, v{reg+r}")
    a(f"v_mul_f32 v{QA+2*r}, v{TT0}, v{XQ+4}")
    a(f"v_mul_f32 v{QA+2*r+1}, v{TT1}, v{XQ+4}")
a(f"v_mul_u32_u24 v{TT0}, 48, v{RG6A}")
a(f"v_lshlrev_b32 v{TT1}, 5, v{C6}")
a(f"v_add_u32 v{TT0}, v{TT0}, v{TT1}")
a("v_cmp_gt_u32 vcc, 480, v0")
a("s_and_saveexec_b64 s[92:93], vcc")
a(f"ds_write_b128 v{TT0}, v[{QA}:{QA+3}] offset:{L_RED+15360}")
a(f"ds_write_b128 v{TT0}, v[{QA+4}:{QA+7}] offset:{L_RED+15360+16}")
a("s_or_b64 exec, exec, s[92:93]")
a("s_waitcnt lgkmcnt(0)")
a("s_barrier")
a("s_cmp_eq_u32 s10, 0")
a("s_cbranch_scc1 L_chain")
HOLD = int(os.environ.get("HOLD", "0"))
if HOLD:
    a("s_barrier")
    prefetch_all(not EARLY)
    a("s_branch L_chain_done2")
else:
    prefetch_all(not EARLY)
    a("s_branch L_chain_done")
a.label("L_chain")
FR = WQR[5]
SUM = ACC
a("s_lshl_b32 s15, s11, 2")
a(f"v_mov_b32 v{FR+26}, s15")
a("s_lshl_b32 s15, s12, 2")
a("s_add_u32 s15, s15, 128")
a(f"v_mov_b32 v{FR+27}, s15")
a(f"v_lshlrev_b32 v{TT1}, 4, v1")
a("v_cmp_gt_u32 vcc, 48, v1")
a("s_and_saveexec_b64 s[92:93], vcc")
for blk in range(4):
    for r in range(5):
        a(f"ds_read_b128 v[{FR+4*r}:{FR+4*r+3}], v{TT1} offset:{L_RED + (blk*5+r)*768}")
    a("s_waitcnt lgkmcnt(0)")
    for r in range(5):
        for e in range(4):
            if blk == 0 and r == 0:
                a(f"v_mov_b32 v{SUM+e}, v{FR+e}")
            else:
                a(f"v_add_f32 v{SUM+e}, v{SUM+e}, v{FR+4*r+e}")
a("s_mov_b64 exec, -1")
a("v_cmp_le_u32 vcc, 48, v1")
a("s_and_saveexec_b64 s[92:93], vcc")
a("v_cmp_gt_u32 vcc, 60, v1")
a("s_and_b64 exec, exec, vcc")
for blk in range(16):
    for r in range(5):
        a(f"ds_read_b128 v[{FR+4*r}:{FR+4*r+3}], v{TT1} offset:{L_RED + 15360 - 768 + (blk*5+r)*192}")
    a("s_waitcnt lgkmcnt(0)")
    for r in range(5):
        for e in range(4):
            if blk == 0 and r == 0:
                a(f"v_mov_b32 v{SUM+e}, v{FR+e}")
            else:
                a(f"v_add_f32 v{SUM+e}, v{SUM+e}, v{FR+4*r+e}")
a("s_mov_b64 exec, -1")
for e in range(4):
    a(f"v_mov_b32 v{FR+16+e}, -1")
a("s_lshl_b32 s14, s2, 10")
a(f"s_add_u32 s14, s14, {WS_PART}")
a("v_cmp_gt_u32 vcc, 49, v1")
a("s_and_saveexec_b64 s[92:93], vcc")
a(f"buffer_store_dwordx4 v[{FR+16}:{FR+19}], v{TT1}, s[24:27], s14 offen sc1")
a("s_mov_b64 exec, -1")
a("s_mul_i32 s14, s12, 20480")
a("s_mul_i32 s15, s11, 640")
a("s_add_u32 s14, s14, s15")
a(f"s_add_u32 s14, s14, {WS_OUTP}")
a("v_cmp_gt_u32 vcc, 40, v1")
a("s_and_saveexec_b64 s[92:93], vcc")
a(f"buffer_store_dwordx4 v[{FR+16}:{FR+19}], v{TT1}, s[24:27], s14 offen sc1")
a("s_mov_b64 exec, -1")
a("s_mov_b32 s94, 0")
a.label("L_flag")
a(f"buffer_load_dword v{FR+24}, v{FR+26}, s[60:63], 0 offen sc1")
a(f"buffer_load_dword v{FR+25}, v{FR+27}, s[60:63], 0 offen sc1")
a("s_waitcnt vmcnt(0)")
a(f"v_min_u32 v{FR+24}, v{FR+24}, v{FR+25}")
a("s_nop 0")
a(f"v_readfirstlane_b32 s15, v{FR+24}")
a("s_nop 3")
a("s_cmp_lg_u32 s15, 0")
a("s_cbranch_scc1 L_flag_ok")
a("s_sleep 8")
a("s_add_u32 s94, s94, 1")
a("s_cmp_lt_u32 s94, 0x100000")
a("s_cbranch_scc1 L_flag")
a.label("L_flag_ok")
a("v_cmp_gt_u32 vcc, 60, v1")
a("s_and_saveexec_b64 s[92:93], vcc")
a("s_lshl_b32 s14, s2, 10")
a(f"s_add_u32 s14, s14, {WS_QP}")
a(f"buffer_store_dwordx4 v[{SUM}:{SUM+3}], v{TT1}, s[24:27], s14 offen sc1")
a("s_mov_b64 exec, -1")
a(f"v_subrev_u32 v{FR+20}, 48, v1")
a(f"v_lshlrev_b32 v{FR+20}, 3, v{FR+20}")
a(f"buffer_load_dwordx2 v[{FR+22}:{FR+23}], v{FR+20}, s[48:51], s95 offen")
G = VBUF[0]
a("v_cmp_gt_u32 vcc, 60, v1")
a("s_and_saveexec_b64 s[92:93], vcc")
a("s_lshl_b32 s15, s11, 13")
a(f"s_add_u32 s15, s15, {WS_QP}")
a("s_mov_b32 s94, 0")
a.label("L_qpoll")
a("s_mov_b32 s14, s15")
for c in range(NCHUNK):
    if c and c % 4 == 0:
        a("s_add_u32 s14, s14, 4096")
    a(f"buffer_load_dwordx4 v[{G+4*c}:{G+4*c+3}], v{TT1}, s[24:27], s14 offen offset:{1024*(c%4)} sc1")
a("s_waitcnt vmcnt(0)")
a(f"v_max_u32 v{FR+24}, v{G}, v{G+1}")
for i in range(2, 32):
    a(f"v_max_u32 v{FR+24}, v{FR+24}, v{G+i}")
a(f"v_cmp_eq_u32 vcc, -1, v{FR+24}")
a("s_cbranch_vccz L_qpoll_done")
a("s_sleep 2")
a("s_add_u32 s94, s94, 1")
a("s_cmp_lt_u32 s94, 0x100000")
a("s_cbranch_scc1 L_qpoll")
a.label("L_qpoll_done")
for e in range(4):
    a(f"v_mov_b32 v{SUM+e}, v{G+e}")
    for c in range(1, NCHUNK):
        a(f"v_add_f32 v{SUM+e}, v{SUM+e}, v{G+4*c+e}")
a(f"v_cvt_pk_bf16_f32 v{FR}, v{SUM}, v{SUM+1}")
a(f"v_cvt_pk_bf16_f32 v{FR+1}, v{SUM+2}, v{SUM+3}")
a(f"v_lshlrev_b32 v{FR+2}, 3, v1")
a("v_cmp_gt_u32 vcc, 48, v1")
a("s_and_saveexec_b64 s[100:101], vcc")
a(f"ds_write_b64 v{FR+2}, v[{FR}:{FR+1}] offset:{L_Q}")
a("s_mov_b64 exec, s[100:101]")
a(f"v_lshlrev_b32 v{SUM}, 16, v{FR}")
a(f"v_and_b32 v{SUM+1}, 0xffff0000, v{FR}")
a(f"v_lshlrev_b32 v{SUM+2}, 16, v{FR+1}")
a(f"v_and_b32 v{SUM+3}, 0xffff0000, v{FR+1}")
a(f"v_lshlrev_b32 v{FR+4}, 16, v{FR+22}")
a(f"v_and_b32 v{FR+5}, 0xffff0000, v{FR+22}")
a(f"v_lshlrev_b32 v{FR+6}, 16, v{FR+23}")
a(f"v_and_b32 v{FR+7}, 0xffff0000, v{FR+23}")
for e in range(4):
    x = SUM + e
    t = FR + 8 + e
    a(f"v_add_f32 v{x}, v{x}, v{FR+4+e}")
    rbf(a, x)
    a(f"v_mul_f32 v{t}, v{x}, v{x}")
    a(f"v_mul_f32 v{t}, {f32(0.044715)}, v{t}")
    a(f"v_add_f32 v{t}, 1.0, v{t}")
    a(f"v_mul_f32 v{t}, v{t}, v{x}")
    a(f"v_mul_f32 v{t}, {f32(-2.0*0.7978845608028654*LOG2E)}, v{t}")
    a(f"v_exp_f32 v{t}, v{t}")
    a("s_nop 1")
    a(f"v_add_f32 v{t}, 1.0, v{t}")
    a(f"v_rcp_f32 v{t}, v{t}")
    a("s_nop 1")
    a(f"v_mul_f32 v{x}, v{x}, v{t}")
    rbf(a, x)
a("v_cmp_le_u32 vcc, 48, v1")
a("s_and_b64 exec, exec, vcc")
a(f"v_lshlrev_b32 v{FR+20}, 1, v{FR+20}")
a(f"ds_write_b128 v{FR+20}, v[{SUM}:{SUM+3}] offset:{L_H}")
a("s_mov_b64 exec, -1")
a("s_waitcnt lgkmcnt(0)")
a("s_barrier")
stamp(2)
prefetch_all()
a("s_branch L_chain_done2")
a.label("L_chain_done")
a("s_barrier")
a.label("L_chain_done2")
for j in range(6):
    a(f"ds_read_b128 v[{Q+4*j}:{Q+4*j+3}], v3 offset:{L_Q+64*j}")
for k in range(2):
    a(f"v_mov_b32 v{AT[k]}, 1")
a("v_cmp_eq_u32 vcc, 0, v1")
a("s_and_saveexec_b64 s[92:93], vcc")
a(f"buffer_atomic_add v{AT[1]}, off, s[24:27], s96 sc0")
a(f"buffer_atomic_add v{AT[0]}, off, s[24:27], s96 sc0")
a("s_or_b64 exec, exec, s[92:93]")
a("s_waitcnt lgkmcnt(0)")
a("v_cmp_le_u32 vcc, 24, v1")
a("v_mov_b32 v5, 0")
a(f"v_mov_b32 v{T}, 4")
a("s_nop 1")
a(f"v_cndmask_b32 v5, v5, v{T}, vcc")
for j in range(8):
    a(f"v_add_u32 v{BP+j}, {8*j}, v5")
    a(f"v_mov_b32 v{ACC+j}, 0")
a(f"v_mov_b32 v{M}, 0xff800000")
a(f"v_mov_b32 v{L}, 0")
a(f"v_mul_u32_u24 v{T}, 205, v0")
a(f"v_lshrrev_b32 v{RG}, 11, v{T}")
a(f"v_mul_u32_u24 v{T}, 10, v{RG}")
a(f"v_sub_u32 v{C24}, v0, v{T}")
a(f"v_mul_u32_u24 v7, 1280, v{RG}")
a(f"v_lshlrev_b32 v{T}, 4, v{C24}")
a(f"v_add_u32 v7, v7, v{T}")
a(f"v_mov_b32 v{T}, 0x40000000")
a("v_cmp_gt_u32 vcc, 480, v0")
a("s_nop 1")
a(f"v_cndmask_b32 v7, v{T}, v7, vcc")
KLA, VLA = WQR[0], WQR[0] + 1
a("s_mul_i32 s14, s10, 12288")
a(f"s_add_u32 s14, s14, {L_T2}")
a(f"v_add_u32 v{KLA}, s14, v2")
a(f"v_add_u32 v{VLA}, s14, v{FLATV}")

def mfma(buf):
    for j in range(6):
        c = "0" if j == 0 else f"v[{D}:{D+3}]"
        a(f"v_mfma_f32_16x16x32_bf16 v[{D}:{D+3}], v[{Q+4*j}:{Q+4*j+3}], v[{KBUF[buf]+4*j}:{KBUF[buf]+4*j+3}], {c}")

def grab(k):
    a(f"v_mov_b32 v{AT[k]}, 1")
    a("v_cmp_eq_u32 vcc, 0, v1")
    a("s_and_saveexec_b64 s[92:93], vcc")
    a(f"buffer_atomic_add v{AT[k]}, off, s[24:27], s96 sc0")
    a("s_or_b64 exec, exec, s[92:93]")

def mid(buf, vwait):
    a("s_nop 8")
    a(f"v_cvt_pk_bf16_f32 v{T}, v{D}, v{D}")
    a(f"v_lshlrev_b32 v{T}, 16, v{T}")
    a(f"v_mul_f32 v{T}, {f32(192 ** -0.5)}, v{T}")
    rbf(a, T)
    a(f"v_mul_f32 v{T}, {f32(LOG2E)}, v{T}")
    a("s_nop 1")
    a(f"v_max_f32_dpp v{T+1}, v{T}, v{T} row_ror:8 row_mask:0xf bank_mask:0xf")
    a("s_nop 1")
    a(f"v_max_f32_dpp v{T+1}, v{T+1}, v{T+1} row_ror:4 row_mask:0xf bank_mask:0xf")
    a("s_nop 1")
    a(f"v_max_f32_dpp v{T+1}, v{T+1}, v{T+1} row_ror:2 row_mask:0xf bank_mask:0xf")
    a("s_nop 1")
    a(f"v_max_f32_dpp v{T+1}, v{T+1}, v{T+1} row_ror:1 row_mask:0xf bank_mask:0xf")
    a(f"v_max_f32 v{T+1}, v{T+1}, v{M}")
    a(f"v_sub_f32 v{T+2}, v{M}, v{T+1}")
    a(f"v_sub_f32 v{T+3}, v{T}, v{T+1}")
    a(f"v_exp_f32 v{T+2}, v{T+2}")
    a(f"v_exp_f32 v{T+3}, v{T+3}")
    a(f"v_mov_b32 v{M}, v{T+1}")
    a(f"v_fma_f32 v{L}, v{L}, v{T+2}, v{T+3}")
    for j in range(8):
        a(f"ds_bpermute_b32 v{P+j}, v{BP+j}, v{T+3}")
    for j in range(8):
        a(f"v_mul_f32 v{ACC+j}, v{ACC+j}, v{T+2}")
    a("s_waitcnt lgkmcnt(0)")
    for j in range(8):
        w = vwait(j)
        if w:
            a(w)
        for r in range(4):
            wv = VBUF[buf] + 4 * j + r
            a(f"v_lshlrev_b32 v{T+4}, 16, v{wv}")
            a(f"v_and_b32 v{T+5}, 0xffff0000, v{wv}")
            a(f"v_fmac_f32 v{ACC+2*r}, v{T+4}, v{P+j}")
            a(f"v_fmac_f32 v{ACC+2*r+1}, v{T+5}, v{P+j}")

_idxn = [0]
def idx_to_off(k, sreg):
    n = _idxn[0]; _idxn[0] += 1
    a(f"v_readfirstlane_b32 s{sreg}, v{AT[k]}")
    a("s_nop 3")
    a(f"s_cmp_ge_u32 s{sreg}, 0x1000")
    a(f"s_cbranch_scc1 L_idx{n}")
    a("s_waitcnt vmcnt(0)")
    a(f"v_readfirstlane_b32 s{sreg}, v{AT[k]}")
    a("s_nop 3")
    a.label(f"L_idx{n}")
    a(f"s_sub_u32 s{sreg}, s{sreg}, {0x1000 - NSTAT}")

a("s_waitcnt vmcnt(0)")
stamp(1, 1)
mfma(0)
EXPG = os.environ.get("EXPG", "0")
if EXPG == "1":
    a(f"s_add_u32 s91, s90, {128*16*384}")
    load_k(0, 91)
    mid(0, lambda j: None)
    load_v(0, 91)
    a("s_waitcnt vmcnt(0)")
else:
    for j in range(6):
        a(f"ds_read_b128 v[{KBUF[0]+4*j}:{KBUF[0]+4*j+3}], v{KLA} offset:{64*j}")
    mid(0, lambda j: None)
    for j in range(8):
        a(f"ds_read_b128 v[{VBUF[0]+4*j}:{VBUF[0]+4*j+3}], v{VLA} offset:{6144+768*j}")
mfma(1)
idx_to_off(1, 91)
a(f"s_mul_i32 s91, s91, {16*384}")
load_k(1, 91)
grab(1)
mid(1, lambda j: None)
load_v(1, 91)
a("s_waitcnt lgkmcnt(0)")
mfma(0)
idx_to_off(0, 91)
a(f"s_mul_i32 s91, s91, {16*384}")
load_k(0, 91)
grab(0)
mid(0, lambda j: None)
load_v(0, 91)
def tail_loads(buf):
    kb = KBUF[buf]
    a(f"s_mul_i32 s14, s11, {192*1280}")
    a("s_mul_i32 s15, s12, 160")
    a("s_add_u32 s14, s14, s15")
    for i in range(4):
        a(f"buffer_load_dwordx4 v[{kb+4*i}:{kb+4*i+3}], v7, s[40:43], s14 offen")
        a(f"s_add_u32 s14, s14, {48*1280}")
    a(f"s_mul_i32 s14, s11, {48*1280}")
    a("s_add_u32 s14, s14, s15")
    a(f"buffer_load_dwordx4 v[{kb+16}:{kb+19}], v7, s[44:47], s14 offen")

a.label("L_loop")
for buf in (1, 0):
    a("s_waitcnt vmcnt(22)")
    mfma(buf)
    idx_to_off(buf, 91)
    a(f"s_cmp_ge_u32 s91, {NT_HEAD}")
    a(f"s_cbranch_scc1 L_drain{buf}")
    a(f"s_mul_i32 s91, s91, {16*384}")
    load_k(buf, 91)
    grab(buf)
    mid(buf, lambda j: f"s_waitcnt vmcnt({20 + 7 - j})")
    load_v(buf, 91)
a("s_branch L_loop")
for buf in (1, 0):
    other = 1 - buf
    a.label(f"L_drain{buf}")
    tail_loads(buf)
    mid(buf, lambda j: f"s_waitcnt vmcnt({19 + 7 - j})")
    a("s_waitcnt vmcnt(13)")
    mfma(other)
    mid(other, lambda j: f"s_waitcnt vmcnt({5 + 7 - j})")
    a(f"s_mov_b32 s94, {KBUF[buf]}")
    a(f"s_branch L_fin{buf}")
stamp_done = False

def finish(buf):
    KB = KBUF[buf]
    R = VBUF[0]
    sfx = str(buf)
    if buf == 1:
        stamp(3)
    a("s_nop 1")
    for sh in (8, 4, 2, 1):
        a(f"v_add_f32_dpp v{L}, v{L}, v{L} row_ror:{sh} row_mask:0xf bank_mask:0xf")
        a("s_nop 1")
    a("s_lshl_b32 s14, s10, 2")
    a(f"v_mov_b32 v{T}, s14")
    a(f"ds_write_b32 v{T}, v{M} offset:{L_WM}")
    a(f"ds_write_b32 v{T}, v{L} offset:{L_WM+64}")
    a("s_mul_i32 s14, s10, 1536")
    a(f"v_lshlrev_b32 v{T}, 5, v1")
    a(f"v_add_u32 v{T}, s14, v{T}")
    a("v_cmp_gt_u32 vcc, 48, v1")
    a("s_and_saveexec_b64 s[92:93], vcc")
    a(f"ds_write_b128 v{T}, v[{ACC}:{ACC+3}] offset:{L_ACC}")
    a(f"ds_write_b128 v{T}, v[{ACC+4}:{ACC+7}] offset:{L_ACC+16}")
    a("s_or_b64 exec, exec, s[92:93]")
    a("s_waitcnt vmcnt(0)")
    for i in range(20):
        a(f"v_mov_b32 v{WQR[1]+i}, v{KB+i}")
    if buf == 0:
        a("s_branch L_common")

a.label("L_fin0")
finish(0)
a.label("L_fin1")
finish(1)
a.label("L_common")
KB = WQR[1]
R = VBUF[0]
a("s_waitcnt lgkmcnt(0)")
a("s_barrier")
a("v_cmp_gt_u32 vcc, 192, v0")
a("s_and_saveexec_b64 s[92:93], vcc")
a("s_cbranch_execz L_rec_done")
a(f"v_mov_b32 v{T}, 0")
a(f"v_lshlrev_b32 v{T+1}, 2, v0")
for w in range(NW):
    a(f"ds_read_b32 v{R+w}, v{T} offset:{L_WM+4*w}")
    a(f"ds_read_b32 v{R+8+w}, v{T} offset:{L_WM+64+4*w}")
    a(f"ds_read_b32 v{R+16+2*w}, v{T+1} offset:{L_ACC+1536*w}")
    a(f"ds_read_b32 v{R+17+2*w}, v{T+1} offset:{L_ACC+1536*w+768}")
a("s_waitcnt lgkmcnt(0)")
a(f"v_mov_b32 v{T+2}, v{R}")
for w in range(1, NW):
    a(f"v_max_f32 v{T+2}, v{T+2}, v{R+w}")
a(f"v_mov_b32 v{T+3}, 0")
a(f"v_mov_b32 v{T+4}, 0")
for w in range(NW):
    a(f"v_sub_f32 v{T+5}, v{R+w}, v{T+2}")
    a(f"v_exp_f32 v{T+5}, v{T+5}")
    a(f"v_add_f32 v{P}, v{R+16+2*w}, v{R+17+2*w}")
    a(f"v_fmac_f32 v{T+3}, v{T+5}, v{R+8+w}")
    a(f"v_fmac_f32 v{T+4}, v{T+5}, v{P}")
a("s_lshl_b32 s14, s2, 10")
a(f"s_add_u32 s14, s14, {WS_PART}")
a(f"buffer_store_dword v{T+4}, v{T+1}, s[24:27], s14 offen sc1")
a("v_cmp_eq_u32 vcc, 0, v0")
a("s_and_saveexec_b64 s[100:101], vcc")
a(f"buffer_store_dword v{T+2}, v{T+1}, s[24:27], s14 offen offset:768 sc1")
a(f"buffer_store_dword v{T+3}, v{T+1}, s[24:27], s14 offen offset:772 sc1")
a("s_mov_b64 exec, s[100:101]")
stamp(4)
a("s_lshl_b32 s15, s11, 13")
a(f"s_add_u32 s15, s15, {WS_PART}")
a(f"v_mov_b32 v{T}, 0")
a("s_mov_b32 s94, 0")
a.label("L_poll")
a("s_mov_b32 s14, s15")
for c in range(NCHUNK):
    if c and c % 4 == 0:
        a("s_add_u32 s14, s14, 4096")
    a(f"buffer_load_dword v{R+c}, v{T+1}, s[24:27], s14 offen offset:{1024*(c%4)} sc1")
    a(f"buffer_load_dwordx2 v[{R+8+2*c}:{R+9+2*c}], v{T}, s[24:27], s14 offen offset:{1024*(c%4)+768} sc1")
a("s_waitcnt vmcnt(0)")
a(f"v_and_b32 v{T+2}, v{R}, v{R+1}")
for i in range(2, 24):
    a(f"v_max_u32 v{T+2}, v{T+2}, v{R+i}") if False else None
a(f"v_max_u32 v{T+2}, v{R}, v{R+1}")
for i in range(2, 24):
    a(f"v_max_u32 v{T+2}, v{T+2}, v{R+i}")
a(f"v_cmp_eq_u32 vcc, -1, v{T+2}")
a("s_cbranch_vccz L_poll_done")
a("s_sleep 1")
a("s_add_u32 s94, s94, 1")
a("s_cmp_lt_u32 s94, 0x100000")
a("s_cbranch_scc1 L_poll")
a.label("L_poll_done")
stamp(5)
a(f"v_mov_b32 v{T+2}, v{R+8}")
for c in range(1, NCHUNK):
    a(f"v_max_f32 v{T+2}, v{T+2}, v{R+8+2*c}")
a(f"v_mov_b32 v{T+3}, 0")
a(f"v_mov_b32 v{T+4}, 0")
for c in range(NCHUNK):
    a(f"v_sub_f32 v{T+5}, v{R+8+2*c}, v{T+2}")
    a(f"v_exp_f32 v{T+5}, v{T+5}")
    a("s_nop 0")
    a(f"v_fmac_f32 v{T+3}, v{T+5}, v{R+9+2*c}")
    a(f"v_fmac_f32 v{T+4}, v{T+5}, v{R+c}")
a(f"v_rcp_f32 v{T+5}, v{T+3}")
a("s_nop 1")
a(f"v_fma_f32 v{T+2}, -v{T+3}, v{T+5}, 1.0")
a(f"v_fmac_f32 v{T+5}, v{T+2}, v{T+5}")
a(f"v_mul_f32 v{T+4}, v{T+4}, v{T+5}")
rbf(a, T + 4)
a(f"ds_write_b32 v{T+1}, v{T+4} offset:{L_O}")
a.label("L_rec_done")
a("s_mov_b64 exec, -1")
a("s_waitcnt lgkmcnt(0)")
a("s_barrier")
a(f"v_lshlrev_b32 v5, 2, v{RG}")
for i in range(4):
    a(f"ds_read_b32 v{R+i}, v5 offset:{L_O + 48*4*i}")
a(f"ds_read_b32 v{R+4}, v5 offset:{L_H}")
for r in range(8):
    a(f"v_mov_b32 v{ACC+r}, 0")
a("s_waitcnt lgkmcnt(0)")
for i in range(4):
    for r in range(4):
        a(f"v_lshlrev_b32 v{T+4}, 16, v{KB+4*i+r}")
        a(f"v_and_b32 v{T+5}, 0xffff0000, v{KB+4*i+r}")
        a(f"v_fmac_f32 v{ACC+2*r}, v{T+4}, v{R+i}")
        a(f"v_fmac_f32 v{ACC+2*r+1}, v{T+5}, v{R+i}")
for r in range(4):
    a(f"v_lshlrev_b32 v{T+4}, 16, v{KB+16+r}")
    a(f"v_and_b32 v{T+5}, 0xffff0000, v{KB+16+r}")
    a(f"v_mul_f32 v{P+2*r}, v{T+4}, v{R+4}")
    a(f"v_mul_f32 v{P+2*r+1}, v{T+5}, v{R+4}")
a(f"v_mul_u32_u24 v5, 640, v{RG}")
a(f"v_lshlrev_b32 v{T}, 5, v{C24}")
a(f"v_add_u32 v5, v5, v{T}")
a("v_cmp_gt_u32 vcc, 480, v0")
a("s_and_saveexec_b64 s[92:93], vcc")
a(f"ds_write_b128 v5, v[{ACC}:{ACC+3}] offset:{L_RED}")
a(f"ds_write_b128 v5, v[{ACC+4}:{ACC+7}] offset:{L_RED+16}")
a(f"ds_write_b128 v5, v[{P}:{P+3}] offset:{L_RED+320}")
a(f"ds_write_b128 v5, v[{P+4}:{P+7}] offset:{L_RED+336}")
a("s_or_b64 exec, exec, s[92:93]")
a("s_waitcnt lgkmcnt(0)")
a("s_barrier")
a("v_cmp_gt_u32 vcc, 160, v0")
a("s_and_saveexec_b64 s[92:93], vcc")
a("s_cbranch_execz L_outp_done")
a("v_lshlrev_b32 v5, 2, v0")
for blk in range(2):
    for r in range(24):
        a(f"ds_read_b32 v{R+r}, v5 offset:{L_RED + (blk*24+r)*640}")
    a("s_waitcnt lgkmcnt(0)")
    for r in range(24):
        if blk == 0 and r == 0:
            a(f"v_mov_b32 v{T}, v{R}")
        else:
            a(f"v_add_f32 v{T}, v{T}, v{R+r}")
a("s_mul_i32 s14, s12, 20480")
a("s_mul_i32 s15, s11, 640")
a("s_add_u32 s14, s14, s15")
a(f"s_add_u32 s14, s14, {WS_OUTP}")
a(f"buffer_store_dword v{T}, v5, s[24:27], s14 offen sc1")
a.label("L_outp_done")
a("s_mov_b64 exec, -1")
stamp(6)
a("s_cmp_lg_u32 s11, 0")
a("s_cbranch_scc1 L_done")
a("v_cmp_gt_u32 vcc, 160, v0")
a("s_and_saveexec_b64 s[92:93], vcc")
a("v_lshlrev_b32 v5, 2, v0")
a("s_mul_i32 s15, s12, 20480")
a(f"s_add_u32 s15, s15, {WS_OUTP}")
F = KBUF[0]
a(f"v_subrev_u32 v{T+1}, 80, v0")
a("v_cmp_gt_u32 vcc, 80, v0")
a("s_nop 1")
a(f"v_cndmask_b32 v{T+1}, v{T+1}, v0, vcc")
a(f"v_lshlrev_b32 v{T+1}, 1, v{T+1}")
a("s_mul_i32 s14, s12, 160")
a(f"buffer_load_ushort v{P}, v{T+1}, s[36:39], s14 offen")
a(f"buffer_load_ushort v{P+1}, v{T+1}, s[52:55], s14 offen")
a("s_cbranch_execz L_fpoll_done")
a("s_mov_b32 s94, 0")
a.label("L_fpoll")
a("s_mov_b32 s14, s15")
for hh in range(32):
    if hh and hh % 4 == 0:
        a("s_add_u32 s14, s14, 2560")
    a(f"buffer_load_dword v{F+hh}, v5, s[24:27], s14 offen offset:{640*(hh%4)} sc1")
a("s_waitcnt vmcnt(0)")
a(f"v_max_u32 v{T+2}, v{F}, v{F+1}")
for hh in range(2, 32):
    a(f"v_max_u32 v{T+2}, v{T+2}, v{F+hh}")
a(f"v_cmp_eq_u32 vcc, -1, v{T+2}")
a("s_cbranch_vccz L_fpoll_done")
a("s_sleep 1")
a("s_add_u32 s94, s94, 1")
a("s_cmp_lt_u32 s94, 0x100000")
a("s_cbranch_scc1 L_fpoll")
a.label("L_fpoll_done")
a("s_mul_i32 s15, s12, 160")
a("s_waitcnt vmcnt(0)")
a(f"v_mov_b32 v{T+2}, v{P}")
a(f"v_mov_b32 v{T+3}, v{P+1}")
a(f"v_mov_b32 v{T}, v{F}")
for hh in range(1, 32):
    a(f"v_add_f32 v{T}, v{T}, v{F+hh}")
rbf(a, T)
a(f"v_lshlrev_b32 v{T+3}, 16, v{T+3}")
a(f"v_add_f32 v{T+4}, v{T}, v{T+3}")
rbf(a, T + 4)
a(f"v_mul_f32 v{T+5}, {f32(-LOG2E)}, v{T+4}")
a(f"v_exp_f32 v{T+5}, v{T+5}")
a("s_nop 1")
a(f"v_add_f32 v{T+5}, 1.0, v{T+5}")
a(f"v_rcp_f32 v{T+5}, v{T+5}")
a("s_nop 1")
a(f"v_mul_f32 v{T+4}, v{T+4}, v{T+5}")
rbf(a, T + 4)
a(f"ds_write_b32 v5, v{T+4} offset:{L_RED}")
a("s_or_b64 exec, exec, s[92:93]")
a("s_waitcnt lgkmcnt(0)")
a("s_barrier")
a("v_cmp_gt_u32 vcc, 80, v0")
a("s_and_saveexec_b64 s[92:93], vcc")
a("s_cbranch_execz L_done")
a(f"ds_read_b32 v{T+4}, v5 offset:{L_RED+320}")
a("s_waitcnt lgkmcnt(0)")
a(f"v_mul_f32 v{T}, v{T}, v{T+4}")
rbf(a, T)
a(f"v_lshlrev_b32 v{T+2}, 16, v{T+2}")
a(f"v_add_f32 v{T}, v{T}, v{T+2}")
a(f"v_cvt_pk_bf16_f32 v{T}, v{T}, v{T}")
a(f"buffer_store_short v{T}, v{T+1}, s[56:59], s15 offen")
a("s_mov_b64 exec, -1")
stamp(7)
a.label("L_done")
a("s_endpgm")

out += a.text()
nv = 254 if DIAG else NV
out += f""".section .rodata,"a"
.p2align 6
.amdhsa_kernel {KN}
  .amdhsa_next_free_vgpr {nv}
  .amdhsa_next_free_sgpr 102
  .amdhsa_accum_offset {(nv+3)//4*4}
  .amdhsa_group_segment_fixed_size 0
  .amdhsa_kernarg_size 104
  .amdhsa_user_sgpr_count 2
  .amdhsa_user_sgpr_kernarg_segment_ptr 1
  .amdhsa_system_sgpr_workgroup_id_x 1
.end_amdhsa_kernel
"""
open(OUT, "w").write(out)
print("wrote", OUT, len(out), "vgpr", nv, "lds", LDS_BYTES)
```
